```python
import torch

def _softmax(x, axis=-1):
    return torch.softmax(x, dim=axis)
def _gelu(x):
    return torch.nn.functional.gelu(x, approximate="tanh")
def _silu(x):
    return torch.nn.functional.silu(x)
def _sigmoid(x):
    return torch.sigmoid(x)
def _layernorm(x, axis=-1, eps=1e-5):
    m = x.mean(dim=axis, keepdim=True)
    v = x.var(dim=axis, keepdim=True, unbiased=False)
    return (x - m) / torch.sqrt(v + eps)
def _scatter_add(tgt, idx, src, axis=0):
    return tgt.clone().index_add_(axis, idx, src)
def _segment_sum(src, seg, n):
    out = torch.zeros((n,) + src.shape[1:], dtype=src.dtype)
    return out.index_add_(0, seg, src)
def _pad(x, pw):
    flat = tuple(v for pair in reversed(pw) for v in pair)
    return torch.nn.functional.pad(x, flat)

kernel_name = 'sequential_preLN__linear_kernel_hedgehog__glu_gated_swiglu__prompt'

def setup_inputs():

    _w = (lambda a: (lambda t: t.to(torch.bfloat16) if t.is_floating_point() else t)(torch.as_tensor(a)))
    def _A_setup():
        B, S, D, H = 1, 2048, 576, 32
        Dh = D // H
        return {
            "x": _w((lambda *s: torch.randn(*s, dtype=torch.bfloat16) * 0.05)(B, S, D)),
            "wqkv": _w((lambda *s: torch.randn(*s, dtype=torch.bfloat16) * 0.2)(D, 3 * D)),
            "w_phi": _w((lambda *s: torch.randn(*s, dtype=torch.bfloat16) * 0.2)(H, Dh, Dh) * (Dh ** -0.5)),
            "wo": _w((lambda *s: torch.randn(*s, dtype=torch.bfloat16) * 0.05)(D, D)),
        }
    _A_in = _A_setup()

    def _B_setup():
        B, S, D, F = 1, 2048, 576, 4608
        return {
            "x": _w((lambda *s: torch.randn(*s, dtype=torch.bfloat16) * 0.05)(B, S, D)),
            "w1": _w((lambda *s: torch.randn(*s, dtype=torch.bfloat16) * 0.4)(D, F) * (2.0 / D) ** 0.5),
            "w3": _w((lambda *s: torch.randn(*s, dtype=torch.bfloat16) * 0.4)(D, F) * (2.0 / D) ** 0.5),
            "w2": _w((lambda *s: torch.randn(*s, dtype=torch.bfloat16) * 0.4)(F, D) * (2.0 / F) ** 0.5),
        }
    _B_in = _B_setup()

    return {
        "A_x": _A_in["x"],
        "A_wqkv": _A_in["wqkv"],
        "A_w_phi": _A_in["w_phi"],
        "A_wo": _A_in["wo"],
        "B_x": _B_in["x"],
        "B_w1": _B_in["w1"],
        "B_w3": _B_in["w3"],
        "B_w2": _B_in["w2"],
    }

def reference(A_x, A_wqkv, A_w_phi, A_wo, B_x, B_w1, B_w3, B_w2):
    def _A_ref(x, wqkv, w_phi, wo):
        B, S, D = x.shape
        H = 32; Dh = D // H
        qkv = (lambda x, *d: x.permute(*d))((x @ wqkv).reshape(B, S, 3, H, Dh), 2, 0, 3, 1, 4)
        q, k, v = qkv[0], qkv[1], qkv[2]
        pq = torch.einsum("bhsd,hdf->bhsf", q, w_phi)
        pk = torch.einsum("bhsd,hdf->bhsf", k, w_phi)
        phi_q = torch.concatenate([_softmax(pq, axis=-1), _softmax(-pq, axis=-1)], axis=-1)
        phi_k = torch.concatenate([_softmax(pk, axis=-1), _softmax(-pk, axis=-1)], axis=-1)
        kv = torch.einsum("bhsf,bhsd->bhfd", phi_k, v)
        z  = torch.einsum("bhsf->bhf", phi_k)
        num = torch.einsum("bhqf,bhfd->bhqd", phi_q, kv)
        den = torch.einsum("bhqf,bhf->bhq", phi_q, z)[..., None] + 1e-6
        o = num / den
        return (lambda x, *d: x.permute(*d))(o, 0, 2, 1, 3).reshape(B, S, D) @ wo

    def _B_ref(x, w1, w3, w2):
        gate = torch.einsum("bsd,df->bsf", x, w1)
        up = torch.einsum("bsd,df->bsf", x, w3)
        h = _silu(gate) * up
        out = torch.einsum("bsf,fd->bsd", h, w2)
        return out

    x = A_x
    h = x + _A_ref(_layernorm(x, axis=-1), A_wqkv, A_w_phi, A_wo)
    h2 = h + _B_ref(_layernorm(h, axis=-1), B_w1, B_w3, B_w2)
    return h2
```

```python
import re

REG_RE = re.compile(r'\b([vas])\[(\d+):(\d+)\]|\b([vas])(\d+)\b|\b(vcc|exec|m0|scc|exec_lo|exec_hi|vcc_lo|vcc_hi)\b')

TRANS = ('v_exp_f32', 'v_log_f32', 'v_rcp_f32', 'v_rsq_f32', 'v_sqrt_f32', 'v_sin_f32', 'v_cos_f32')


def regs_of(op):
    out = []
    for m in REG_RE.finditer(op):
        if m.group(1):
            out += [(m.group(1), i) for i in range(int(m.group(2)), int(m.group(3)) + 1)]
        elif m.group(4):
            out.append((m.group(4), int(m.group(5))))
        else:
            out.append((m.group(6).split('_')[0], 0))
    return out


def split_ops(s):
    ops, depth, cur = [], 0, ''
    for ch in s:
        if ch == '[' or ch == '(':
            depth += 1
        elif ch == ']' or ch == ')':
            depth -= 1
        if ch == ',' and depth == 0:
            ops.append(cur.strip())
            cur = ''
        else:
            cur += ch
    if cur.strip():
        ops.append(cur.strip())
    return ops


class Ins:
    __slots__ = ('text', 'mn', 'kind', 'wr', 'rd', 'passes', 'srcc', 'srcab', 'states', 'wide_store', 'is_lds_dma',
                 'dpp', 'sdata')

    def __init__(self, text):
        self.text = text
        t = text.split(';')[0].strip()
        parts = t.split(None, 1)
        mn = parts[0]
        rest = parts[1] if len(parts) > 1 else ''
        self.mn = mn
        self.wr, self.rd = [], []
        self.passes = 0
        self.srcc, self.srcab = [], []
        self.states = 1
        self.wide_store = False
        self.is_lds_dma = False
        self.dpp = (' row_' in t or 'quad_perm' in t or '_dpp' in mn)
        self.sdata = []
        ops = split_ops(rest)
        if mn.endswith(':'):
            self.kind = 'label'
            self.states = 0
            return
        if mn.startswith('v_mfma'):
            self.kind = 'mfma'
            self.wr = regs_of(ops[0])
            self.srcab = regs_of(ops[1]) + regs_of(ops[2])
            self.srcc = regs_of(ops[3].split()[0])
            self.rd = self.srcab + self.srcc
            self.passes = 8 if '32x32' in mn else 4
        elif mn.startswith('v_'):
            self.kind = 'trans' if mn.replace('_e32', '').replace('_e64', '') in TRANS else 'valu'
            allr = [regs_of(o.split()[0]) if i == len(ops) - 1 else regs_of(o) for i, o in enumerate(ops)]
            if (mn.startswith('v_permlane') and 'swap' in mn) or mn.startswith('v_swap'):
                self.wr = allr[0] + allr[1]
                self.rd = allr[0] + allr[1]
            elif mn.startswith('v_cmp'):
                self.wr = allr[0]
                self.rd = sum(allr[1:], [])
            elif mn.startswith(('v_add_co', 'v_sub_co', 'v_addc_co', 'v_subb_co')):
                self.wr = allr[0] + allr[1]
                self.rd = sum(allr[2:], [])
            else:
                self.wr = allr[0]
                self.rd = sum(allr[1:], [])
                if mn.startswith(('v_fmac', 'v_dot2c', 'v_pk_fmac')) or self.dpp or mn.startswith('v_writelane'):
                    self.rd = self.rd + allr[0]
                if mn.startswith('v_cndmask') and len(ops) == 3:
                    self.rd.append(('vcc', 0))
        elif mn.startswith('ds_'):
            self.kind = 'ds'
            allr = [regs_of(o.split()[0]) if i == len(ops) - 1 else regs_of(o) for i, o in enumerate(ops)]
            if mn.startswith(('ds_read', 'ds_bpermute', 'ds_permute', 'ds_swizzle')) or '_rtn' in mn:
                self.wr = allr[0]
                self.rd = sum(allr[1:], [])
            else:
                self.rd = sum(allr, [])
        elif mn.startswith(('buffer_', 'global_')):
            self.kind = 'vmem'
            if mn in ('buffer_wbl2', 'buffer_inv'):
                return
            toks = t.split()
            lds = ('lds' in toks) or ('_lds_' in mn)
            self.is_lds_dma = lds
            allr = [regs_of(o.split()[0]) if i == len(ops) - 1 else regs_of(o) for i, o in enumerate(ops)]
            if 'load' in mn and not lds:
                self.wr = allr[0]
                self.rd = sum(allr[1:], [])
            elif 'atomic' in mn and 'sc0' in toks:
                self.wr = allr[0]
                self.rd = sum(allr, []) if mn.startswith('buffer') else sum(allr[1:], [])
            else:
                self.rd = sum(allr, [])
                if lds:
                    self.rd.append(('m0', 0))
                if 'store' in mn and ('x4' in mn or 'x3' in mn):
                    self.wide_store = True
                    self.sdata = allr[0] if mn.startswith('buffer') else allr[1]
        elif mn.startswith('s_load') or mn.startswith('s_memtime') or mn.startswith('s_memrealtime') or mn.startswith('s_atomic'):
            self.kind = 'smem'
            allr = [regs_of(o) for o in ops]
            self.wr = allr[0]
            self.rd = sum(allr[1:], [])
        elif mn == 's_nop':
            self.kind = 'nop'
            self.states = int(rest.strip(), 0) + 1
        elif mn == 's_waitcnt':
            self.kind = 'wait'
        elif mn in ('s_barrier', 's_endpgm', 's_sleep', 's_setprio'):
            self.kind = 'misc'
        elif mn.startswith(('s_branch', 's_cbranch')):
            self.kind = 'branch'
        elif mn.startswith('s_'):
            self.kind = 'salu'
            allr = [regs_of(o) for o in ops]
            if mn.startswith('s_cmp'):
                self.rd = sum(allr, [])
            else:
                self.wr = allr[0]
                self.rd = sum(allr[1:], [])
                if 'saveexec' in mn:
                    self.wr = self.wr + [('exec', 0)]
        else:
            raise ValueError('unknown instruction: ' + text)


def overlap(a, b):
    sa = set(a)
    return any(x in sa for x in b)


def is_vec(r):
    return r[0] in ('v', 'a')


def need_states(p, c):
    n = 0
    pv = p.kind in ('valu', 'trans')
    cv = c.kind in ('valu', 'trans')
    if pv:
        pw_v = [r for r in p.wr if is_vec(r)]
        pw_s = [r for r in p.wr if not is_vec(r)]
        if c.kind == 'mfma' and overlap(pw_v, c.rd):
            n = max(n, 2)
        if cv and (c.mn.startswith('v_permlane') or c.dpp) and overlap(pw_v, c.rd):
            n = max(n, 2)
        if cv and c.mn.startswith(('v_readlane', 'v_readfirstlane')) and overlap(pw_v, c.rd):
            n = max(n, 1)
        if p.kind == 'trans' and cv and overlap(pw_v, c.rd):
            n = max(n, 1)
        if p.mn.startswith('v_dot') and (overlap(pw_v, c.rd) or overlap(pw_v, c.wr)):
            n = max(n, 3)
        if pw_s:
            if cv and overlap(pw_s, c.rd):
                n = max(n, 4 if c.mn.startswith(('v_readlane', 'v_writelane')) else 2)
            if c.kind in ('vmem',) and overlap(pw_s, c.rd):
                n = max(n, 5)
            if c.kind in ('salu', 'smem', 'branch') and (overlap(pw_s, c.rd) or c.kind == 'branch'):
                n = max(n, 4)
            if ('exec', 0) in pw_s:
                n = max(n, 5)
    if p.kind == 'mfma':
        big = p.passes == 8
        if c.kind == 'mfma':
            if overlap(p.wr, c.srcab):
                n = max(n, 12 if big else 8)
            if overlap(p.wr, c.srcc):
                if not (p.wr == c.srcc and p.passes == c.passes):
                    n = max(n, 10 if big else 6)
            elif overlap(p.wr, c.wr):
                n = max(n, 12 if big else 8)
        elif cv or c.kind in ('vmem', 'ds'):
            if overlap(p.wr, c.rd) or overlap(p.wr, c.wr):
                n = max(n, 12 if big else 8)
            if overlap(p.srcc, c.wr):
                n = max(n, 7 if big else 3)
    if p.kind == 'vmem' and p.wide_store:
        if overlap(p.sdata, c.wr):
            n = max(n, 2)
    if p.kind == 'salu' and ('m0', 0) in p.wr and c.kind == 'vmem' and c.is_lds_dma:
        n = max(n, 1)
    return n


class Kern:
    def __init__(self, name):
        self.name = name
        self.ins = []
        self.vm = []
        self.lg = []
        self.smem_pending = False
        self.nid = 0
        self.auto = True

    def _pad(self, c):
        need = 0
        dist = 0
        for p in reversed(self.ins):
            if dist >= 20:
                break
            n = need_states(p, c)
            if n > dist:
                need = max(need, n - dist)
            dist += p.states
        while need > 0:
            k = min(need, 16)
            self.ins.append(Ins('s_nop %d' % (k - 1)))
            need -= k

    def _emit(self, c):
        self._pad(c)
        self.ins.append(c)

    def _wait(self, vm=None, lg=None):
        parts = []
        if vm is not None:
            vm = min(vm, 63)
            parts.append('vmcnt(%d)' % vm)
            self.vm = self.vm[len(self.vm) - vm:] if vm > 0 else []
        if lg is not None:
            lg = min(lg, 15)
            parts.append('lgkmcnt(%d)' % lg)
            self.lg = self.lg[len(self.lg) - lg:] if lg > 0 else []
            if lg == 0:
                self.smem_pending = False
        self.ins.append(Ins('s_waitcnt ' + ' '.join(parts)))

    def _auto_wait(self, c):
        touched = set(c.rd) | set(c.wr)
        vmn = None
        for i, (_id, dst) in enumerate(self.vm):
            if any(r in touched for r in dst):
                vmn = len(self.vm) - 1 - i
        lgn = None
        for i, (_id, dst) in enumerate(self.lg):
            if any(r in touched for r in dst):
                lgn = len(self.lg) - 1 - i
        if lgn is not None and self.smem_pending:
            lgn = 0
        if vmn is not None or lgn is not None:
            self._wait(vmn, lgn)

    def __call__(self, text):
        text = text.strip()
        c = Ins(text)
        if self.auto and c.kind not in ('label', 'wait', 'nop'):
            self._auto_wait(c)
        self._emit(c)
        self.nid += 1
        if c.kind == 'vmem':
            self.vm.append((self.nid, list(c.wr)))
        elif c.kind == 'ds':
            self.lg.append((self.nid, list(c.wr)))
        elif c.kind == 'smem':
            self.lg.append((self.nid, list(c.wr)))
            self.smem_pending = True
        return self.nid

    def wait_vm(self, opid):
        for i, (_id, _d) in enumerate(self.vm):
            if _id == opid:
                self._wait(vm=len(self.vm) - 1 - i)
                return

    def wait_lg(self, opid):
        for i, (_id, _d) in enumerate(self.lg):
            if _id == opid:
                self._wait(lg=0 if self.smem_pending else len(self.lg) - 1 - i)
                return

    def wait_all(self, vm=True, lg=True):
        self._wait(0 if vm else None, 0 if lg else None)

    def wait_lg0(self):
        if self.lg:
            self._wait(lg=0)

    def wait_vm0(self):
        self._wait(vm=0)

    def label(self, name):
        self.ins.append(Ins(name + ':'))

    def nop(self, n):
        self.ins.append(Ins('s_nop %d' % (n - 1)))

    def comment(self, s):
        pass

    def text(self):
        out = []
        for i in self.ins:
            out.append(i.text if i.kind == 'label' else '    ' + i.text)
        return '\n'.join(out)

    def maxregs(self):
        mv = ma = ms = -1
        for i in self.ins:
            for r in list(i.wr) + list(i.rd):
                if r[0] == 'v':
                    mv = max(mv, r[1])
                elif r[0] == 'a':
                    ma = max(ma, r[1])
                elif r[0] == 's':
                    ms = max(ms, r[1])
        return mv + 1, ma + 1, ms + 1


def vr(base, n=1, f='v'):
    return '%s%d' % (f, base) if n == 1 else '%s[%d:%d]' % (f, base, base + n - 1)


def ar(base, n=1):
    return vr(base, n, 'a')


def sr(base, n=1):
    return vr(base, n, 's')


def kernel_text(k, accum_offset=None, extra_desc=''):
    nv, na, ns = k.maxregs()
    if accum_offset is None:
        accum_offset = max(4, (nv + 3) // 4 * 4)
    assert nv <= accum_offset, (k.name, nv, accum_offset)
    nfv = accum_offset + na if na > 0 else max(nv, 1)
    ns = max(ns, 8)
    body = """.text
.globl {n}
.p2align 8
.type {n},@function
{n}:
{body}
""".format(n=k.name, body=k.text())
    desc = """.section .rodata,"a"
.p2align 6
.amdhsa_kernel {n}
  .amdhsa_next_free_vgpr {nfv}
  .amdhsa_next_free_sgpr {ns}
  .amdhsa_accum_offset {ao}
  .amdhsa_group_segment_fixed_size 0
  .amdhsa_kernarg_size 88
  .amdhsa_user_sgpr_count 2
  .amdhsa_user_sgpr_kernarg_segment_ptr 1
  .amdhsa_system_sgpr_workgroup_id_x 1
  .amdhsa_float_denorm_mode_32 3
{extra}.end_amdhsa_kernel
""".format(n=k.name, nfv=nfv, ns=ns, ao=accum_offset, extra=extra_desc)
    return body, desc


class Alloc:
    def __init__(self, start=0, limit=256):
        self.n = start
        self.limit = limit

    def __call__(self, cnt=1, align=1):
        self.n = (self.n + align - 1) // align * align
        b = self.n
        self.n += cnt
        assert self.n <= self.limit, ('out of regs', self.n, self.limit)
        return b


def mask64(pred):
    m = 0
    for l in range(64):
        if pred(l):
            m |= 1 << l
    return m


def smask(k, sreg, pred):
    m = mask64(pred)
    k('s_mov_b32 s%d, 0x%x' % (sreg, m & 0xffffffff))
    k('s_mov_b32 s%d, 0x%x' % (sreg + 1, m >> 32))


def set_exec(k, pred):
    m = mask64(pred)
    if m == (1 << 64) - 1:
        k('s_mov_b64 exec, -1')
    else:
        k('s_mov_b32 exec_lo, 0x%x' % (m & 0xffffffff))
        k('s_mov_b32 exec_hi, 0x%x' % (m >> 32))


def lit(v):
    v &= 0xffffffff
    if v <= 64:
        return str(v)
    if v >= 0xfffffff0:
        return str(v - (1 << 32))
    return '0x%x' % v


def lanefn(k, dst, src, f, nbits, tmp, maxterms=6):
    n = 1 << nbits
    c = [f(i) for i in range(n)]
    for b in range(nbits):
        for i in range(n):
            if i >> b & 1:
                c[i] -= c[i ^ (1 << b)]
    terms = [(i, c[i]) for i in range(1, n) if c[i] != 0]
    lin = {i.bit_length() - 1: v for i, v in terms if i & (i - 1) == 0}
    hi = [(i, v) for i, v in terms if i & (i - 1) != 0]
    assert len(hi) <= maxterms, ('lanefn too complex', len(hi))
    fields = []
    b = 0
    while b < nbits:
        if b not in lin:
            b += 1
            continue
        s = b
        co = lin[b]
        while b + 1 in lin and lin[b + 1] == 2 * lin[b]:
            b += 1
        fields.append((s, b - s + 1, co))
        b += 1
    first = True
    const = c[0]
    cur = None
    for (s, w, co) in fields:
        if s == 0 and w == nbits:
            t = 'v%d' % src
        elif s + w == nbits:
            k('v_lshrrev_b32 v%d, %d, v%d' % (tmp, s, src))
            t = 'v%d' % tmp
        elif s == 0:
            k('v_and_b32 v%d, %s, v%d' % (tmp, lit((1 << w) - 1), src))
            t = 'v%d' % tmp
        else:
            k('v_bfe_u32 v%d, v%d, %d, %d' % (tmp, src, s, w))
            t = 'v%d' % tmp
        if first:
            if co > 0 and co & (co - 1) == 0 and 0 <= const <= 64:
                k('v_lshl_add_u32 v%d, %s, %d, %s' % (dst, t, co.bit_length() - 1, lit(const)))
            else:
                k('v_mov_b32 v%d, %s' % (dst, lit(const)))
                _mad(k, dst, t, co, tmp)
            first = False
        else:
            _mad(k, dst, t, co, tmp)
    if first:
        k('v_mov_b32 v%d, %s' % (dst, lit(const)))
    for (m, v) in hi:
        k('v_and_b32 v%d, %s, v%d' % (tmp, lit(m), src))
        k('v_cmp_eq_u32 vcc, %s, v%d' % (lit(m), tmp))
        k('v_mov_b32 v%d, %s' % (tmp, lit(v)))
        k('v_cndmask_b32 v%d, 0, v%d, vcc' % (tmp, tmp))
        k('v_add_u32 v%d, v%d, v%d' % (dst, dst, tmp))


def _mad(k, dst, t, co, tmp):
    if co > 0 and co & (co - 1) == 0:
        k('v_lshl_add_u32 v%d, %s, %d, v%d' % (dst, t, co.bit_length() - 1, dst))
    else:
        assert abs(co) < (1 << 23)
        k('v_mul_i32_i24 v%d, %s, %s' % (tmp, lit(co), t))
        k('v_add_u32 v%d, v%d, v%d' % (dst, dst, tmp))
```

```python
from asmlib import *

KV_OFF = 0
KVL_REL = 81920
KV_BYTES = 92160
MEANX_OFF = 0x20000
WBAR_OFF = 0x22000
SSQ_OFF = 0x24000
PHIQ_OFF = 0x40000
PHIL_OFF = 0x440000
H_OFF = 0x500000
HC_OFF = 0x740000
HH_OFF = 0x1000000
PART_OFF = 0x2200000
BIG = 0x40000000
LOG2E = 1.4426950408889634


def f32(x):
    import struct
    return '0x%08x' % struct.unpack('<I', struct.pack('<f', x))[0]


def srd(k, sd, sptr, off_s=None, off_c=0, nrec=None, nrec_s=None):
    if off_s is None and off_c == 0:
        k('s_mov_b32 s%d, s%d' % (sd, sptr))
        k('s_mov_b32 s%d, s%d' % (sd + 1, sptr + 1))
    else:
        src = sptr
        if off_c:
            k('s_add_u32 s%d, s%d, %s' % (sd, src, lit(off_c)))
            k('s_addc_u32 s%d, s%d, 0' % (sd + 1, src + 1))
            src = sd
        if off_s is not None:
            k('s_add_u32 s%d, s%d, s%d' % (sd, src, off_s))
            k('s_addc_u32 s%d, s%d, 0' % (sd + 1, src + 1))
    if nrec_s is not None:
        k('s_mov_b32 s%d, s%d' % (sd + 2, nrec_s))
    else:
        k('s_mov_b32 s%d, %s' % (sd + 2, lit(nrec)))
    k('s_mov_b32 s%d, 0x00020000' % (sd + 3))


class Sched:
    def __init__(self, n):
        self.n = n
        self.pre = [[] for _ in range(n + 1)]

    def at(self, pos, fn):
        pos = max(0, min(self.n, pos))
        self.pre[pos].append(fn)

    def spread(self, p0, p1, fns):
        m = p1 - p0
        for i, fn in enumerate(fns):
            self.at(p0 + (i * m) // len(fns), fn)

    def run(self, slotfn):
        for i in range(self.n):
            for fn in self.pre[i]:
                fn()
            slotfn(i)
        for fn in self.pre[self.n]:
            fn()


def I(k, text):
    return lambda: k(text)
```

```python
from common import *


def wave_sel(k, sd, vals, sw=3):
    k('s_mov_b32 s%d, %s' % (sd, lit(vals[3])))
    for w in range(3):
        if vals[w] != vals[3]:
            k('s_cmp_eq_u32 s%d, %d' % (sw, w))
            k('s_cselect_b32 s%d, %s, s%d' % (sd, lit(vals[w]), sd))


def wave_mask(k, sd, preds):
    ms = [mask64(p) for p in preds]
    wave_sel(k, sd, [m & 0xffffffff for m in ms])
    wave_sel(k, sd + 1, [m >> 32 for m in ms])


def k1():
    k = Kern('k1_kernel')
    V = Alloc(1, 256)
    vt = V(); vt2 = V(); vlane = V(); vBIG = V()
    vDW = [V() for _ in range(4)]; vDX = [V() for _ in range(4)]
    vXB = [V(), V()]; vWA = V(); vWL = V()
    vKA = V(); vKB = V(); vKL = V()
    vPm = V(); vPl = V(); vPv = V(); vPg = V()
    vAt = [V() for _ in range(4)]; vAl = [V() for _ in range(4)]
    vQ = V(); vQL = V(); vMXo = V(); vTk = V(); vFl = V(); vZo = V(); vZ2 = V(); vWBo = V()
    ones = V(4, 2)
    wrow = V(8, 2)
    wacc = V(4, 2)
    zer = wacc
    Am = V(12, 2); Alq = V(6, 2); Alk = V(6, 2)
    acc = V(56, 2)
    aS = V(8, 2); aG = V(8, 2); cs = V(28, 2)
    vmean = V(2); vrstd = V(2); vc = V(2); vsL = V(2)
    Bq = V(8, 2); Bk = V(8, 2); BL = V(4, 2); Bv = wrow
    Pk = V(24, 2)
    Pq = cs
    tm = V(14, 2)
    kvacc = acc
    RA = 10; aA = 0; aB = 40; NBK = 3
    aKA = 64; aKB = 80
    WSL = 15360; XB = 61440; PV = 126976; WP = 155648; ZA = WP + 1296
    g = lambda l: (l >> 4) & 3
    m = lambda l: l & 15
    r_ = lambda l: (l >> 2) & 3
    cc = lambda l: l & 3
    wv = lambda t: t >> 6

    k('s_cmp_ge_u32 s2, 256')
    k('s_cbranch_scc1 k1_end')
    k('s_load_dwordx8 s[4:11], s[0:1], 0')
    k('s_load_dwordx4 s[12:15], s[0:1], 72')
    k('v_lshrrev_b32 v%d, 6, v0' % vt)
    k('v_and_b32 v%d, 63, v0' % vlane)
    k('v_readfirstlane_b32 s3, v%d' % vt)
    k('v_mov_b32 v%d, 0x%x' % (vBIG, BIG))
    k('s_and_b32 s16, s2, 7')
    k('s_lshr_b32 s17, s2, 3')
    k('s_and_b32 s18, s17, 15')
    k('s_lshr_b32 s17, s17, 4')
    k('s_lshl_b32 s17, s17, 3')
    k('s_add_u32 s17, s17, s16')
    k('s_lshl_b32 s19, s18, 2')
    k('v_mov_b32 v%d, s19' % vt)
    k('v_cmp_eq_u32 vcc, 0, v0')
    k('v_cndmask_b32 v%d, v%d, v%d, vcc' % (vZo, vBIG, vt))
    k('v_mov_b32 v%d, 1' % vTk)
    srd(k, 20, 12, nrec=256)
    k('buffer_atomic_add v%d, v%d, s[20:23], 0 offen sc0 sc1' % (vTk, vZo))
    wio = [0, 768, 1792, 2816]
    k('s_mul_i32 s19, s3, %d' % (16 * 3456))
    for i in range(4):
        q0 = 0 if i == 0 else 48 + 64 * (i - 1)
        d = vDW[i]
        k('v_add_u32 v%d, %s, v%d' % (vt, lit(q0), vlane))
        k('v_mul_u32_u24 v%d, 0x%x, v%d' % (d, 4370, vt))
        k('v_lshrrev_b32 v%d, 16, v%d' % (d, d))
        k('v_mul_u32_u24 v%d, 15, v%d' % (vt2, d))
        k('v_sub_u32 v%d, v%d, v%d' % (vt, vt, vt2))
        k('v_mul_u32_u24 v%d, 0x%x, v%d' % (d, 3456, d))
        k('v_lshl_add_u32 v%d, v%d, 4, v%d' % (d, vt, d))
        k('v_mul_u32_u24 v%d, 0x%x, v%d' % (vt, 13108, vt))
        k('v_lshrrev_b32 v%d, 16, v%d' % (vt, vt))
        k('v_mul_u32_u24 v%d, 0x%x, v%d' % (vt, 1152 - 80, vt))
        k('v_add3_u32 v%d, v%d, v%d, s19' % (d, d, vt))
        if wio[i]:
            k('v_subrev_u32 v%d, 0x%x, v%d' % (d, wio[i], d))
    k('s_mul_i32 s19, s18, 72')
    k('s_sub_u32 s40, %d, s19' % (576 * 3456))
    srd(k, 24, 6, off_s=19, nrec_s=40)
    k('v_lshrrev_b32 v%d, 4, v%d' % (vt, vlane))
    k('v_and_b32 v%d, 7, v%d' % (vt2, vlane))
    k('v_xor_b32 v%d, v%d, v%d' % (vt, vt, vt2))
    k('v_lshrrev_b32 v%d, 3, v%d' % (vt2, vlane))
    k('v_mul_u32_u24 v%d, 0x480, v%d' % (vt2, vt2))
    k('v_lshl_add_u32 v%d, v%d, 4, v%d' % (vDX[0], vt, vt2))
    k('v_xor_b32 v%d, 4, v%d' % (vt, vt))
    k('v_lshl_add_u32 v%d, v%d, 4, v%d' % (vDX[1], vt, vt2))
    k('v_add_u32 v%d, 0x%x, v%d' % (vDX[1], 9216 - 1024, vDX[1]))
    k('v_add_u32 v%d, 0x%x, v%d' % (vDX[2], 2 * (9216 - 1024), vDX[0]))
    k('v_add_u32 v%d, 0x%x, v%d' % (vDX[3], 2 * (9216 - 1024), vDX[1]))
    k('s_lshl_b32 s41, s17, 2')
    k('s_add_u32 s41, s41, s3')
    k('s_mul_i32 s19, s41, %d' % (32 * 1152))
    srd(k, 28, 4, off_s=19, nrec=32 * 1152)
    k('s_mul_i32 s42, s3, %d' % (16 * 240))
    k('s_lshl_b32 s43, s3, 12')
    k('s_add_u32 s43, s43, %d' % XB)
    k('s_mov_b32 s44, 0')
    k('s_mov_b32 s45, 0')
    dma_last = {}

    def dma(c):
        k('s_add_u32 m0, s42, %d' % ((c % 4) * WSL))
        k('s_mov_b32 exec_hi, 0xffff')
        k('buffer_load_dwordx4 v%d, s[24:27], s44 offen lds' % vDW[0])
        k('s_mov_b32 exec_hi, -1')
        for i in range(1, 4):
            k('buffer_load_dwordx4 v%d, s[24:27], s44 offen offset:%d lds' % (vDW[i], wio[i]))
        k('s_add_u32 m0, s43, %d' % ((c % 4) * 16384))
        k('s_add_u32 s44, s44, %d' % (64 * 3456))
        for i in range(4):
            dma_last[c] = k('buffer_load_dwordx4 v%d, s[28:31], s45 offen offset:%d lds' % (vDX[i], 1024 * i))
        k('s_add_u32 s45, s45, 128')
    dma(0)
    k('s_mul_i32 s19, s18, 1296')
    srd(k, 32, 8, off_s=19, nrec=1296)
    k('v_lshlrev_b32 v%d, 4, v%d' % (vQ, vlane))
    k('s_mov_b32 m0, %d' % WP)
    k('buffer_load_dwordx4 v%d, s[32:35], 0 offen lds' % vQ)
    wp_id = k('buffer_load_dwordx4 v%d, s[32:35], 0 offen offset:1024 lds' % vQ)
    dma(1)
    k('s_lshl_b32 s46, s2, 2')
    k('s_add_u32 s46, s46, s3')
    k('s_mul_i32 s19, s46, 1152')
    srd(k, 36, 10, nrec=576 * 1152)
    k('buffer_load_dwordx4 %s, v%d, s[36:39], s19 offen' % (vr(wrow, 4), vQ))
    k('v_lshlrev_b32 v%d, 2, v%d' % (vt, vlane))
    smask(k, 48, lambda l: l < 32)
    k('v_cndmask_b32 v%d, v%d, v%d, s[48:49]' % (vt, vBIG, vt))
    k('buffer_load_dword v%d, v%d, s[36:39], s19 offen offset:1024' % (wrow + 4, vt))
    dma(2)
    dma(3)
    for i in range(4):
        k('v_mov_b32 v%d, 0x3f803f80' % (ones + i))
        k('v_mov_b32 v%d, 0' % (zer + i))
    for i in range(5, 8):
        k('v_mov_b32 v%d, 0' % (wrow + i))
    srd(k, 52, 14, off_c=KV_OFF, nrec=KV_BYTES)
    k('v_readfirstlane_b32 s47, v%d' % vTk)
    k('s_or_b32 s47, s47, s3')
    k('s_cmp_eq_u32 s47, 0')
    k('s_cselect_b32 s47, 0, 0x%x' % BIG)
    k('v_add_u32 v%d, s47, v%d' % (vZo, vQ))
    smask(k, 48, lambda l: l < 40)
    k('v_cndmask_b32 v%d, v%d, v%d, s[48:49]' % (vZ2, vBIG, vZo))
    k('s_mul_i32 s19, s18, 5120')
    for i in range(4):
        k('buffer_store_dwordx4 %s, v%d, s[52:55], s19 offen offset:%d sc0 sc1' % (vr(zer, 4), vZo, 1024 * i))
    k('s_add_u32 s19, s19, 4096')
    k('buffer_store_dwordx4 %s, v%d, s[52:55], s19 offen sc0 sc1' % (vr(zer, 4), vZo))
    k('s_mul_i32 s19, s18, 640')
    k('s_add_u32 s19, s19, %d' % KVL_REL)
    k('buffer_store_dwordx4 %s, v%d, s[52:55], s19 offen sc0 sc1' % (vr(zer, 4), vZ2))
    k('s_lshl_b32 s19, s18, 2')
    k('s_add_u32 s19, s19, 64')
    k('v_mov_b32 v%d, s19' % vFl)
    smask(k, 48, lambda l: l == 0)
    k('v_add_u32 v%d, s47, v%d' % (vt, vFl))
    k('v_cndmask_b32 v%d, v%d, v%d, s[48:49]' % (vZ2, vBIG, vt))
    k('v_mov_b32 v%d, 1' % vTk)
    k('v_lshrrev_b32 v%d, 4, v%d' % (vt, vlane))
    k('v_bfe_u32 v%d, v%d, 1, 3' % (vt2, vlane))
    k('v_xor_b32 v%d, v%d, v%d' % (vt, vt, vt2))
    k('v_and_b32 v%d, 15, v%d' % (vt2, vlane))
    k('v_lshlrev_b32 v%d, 7, v%d' % (vt2, vt2))
    k('v_add_u32 v%d, s43, v%d' % (vt2, vt2))
    k('v_lshl_add_u32 v%d, v%d, 4, v%d' % (vXB[0], vt, vt2))
    k('v_xor_b32 v%d, 4, v%d' % (vt, vt))
    k('v_lshl_add_u32 v%d, v%d, 4, v%d' % (vXB[1], vt, vt2))
    lanefn(k, vWA, vlane, lambda l: (8 * g(l) + r_(l)) * 240 + (0, 8, 40, 48)[cc(l)], 6, vt)
    lanefn(k, vWL, vlane, lambda l: (8 * g(l) + r_(l)) * 240 + (32, 112, 192, 72)[cc(l)], 6, vt)
    lanefn(k, vKA, 0, lambda t: PV + (4 * g(t) + r_(t)) * 224 + ((144 + 32 * wv(t) + (0, 16, 8, 24)[cc(t)]) if wv(t) < 2 else (208, 216, 216, 216)[cc(t)]), 8, vt)
    lanefn(k, vKB, 0, lambda t: PV + (4 * g(t) + r_(t)) * 224 + 64 * (wv(t) & 1) + 8 * cc(t), 8, vt)
    lanefn(k, vKL, vlane, lambda l: PV + (4 * g(l) + r_(l)) * 224 + 128 + 8 * (cc(l) & 1), 6, vt)
    lanefn(k, vPm, 0, lambda t: PV + (32 * wv(t) + m(t)) * 224 + 32 * g(t), 8, vt)
    lanefn(k, vPl, 0, lambda t: PV + (32 * wv(t) + m(t)) * 224 + 128 + 4 * g(t), 8, vt)
    lanefn(k, vPv, 0, lambda t: PV + (32 * wv(t) + m(t)) * 224 + 144 + 16 * g(t), 8, vt)
    lanefn(k, vPg, 0, lambda t: PV + (32 * wv(t) + m(t)) * 224 + 192 + 8 * g(t), 8, vt)
    lanefn(k, tm, 0, lambda t: (g(t) * 256 if wv(t) < 2 else (1024 if g(t) == 0 else 1152)), 8, vt)
    k('s_and_b32 s19, s3, 1')
    k('s_lshl_b32 s40, s18, 1')
    k('s_add_u32 s19, s19, s40')
    k('s_mul_i32 s19, s19, 2560')
    lanefn(k, tm + 1, vlane, lambda l: m(l) * 4, 6, vt)
    k('v_add3_u32 v%d, v%d, v%d, s19' % (tm + 1, tm + 1, tm))
    k('s_mul_i32 s19, s18, 640')
    k('s_add_u32 s19, s19, %d' % KVL_REL)
    lanefn(k, tm + 2, vlane, lambda l: ((m(l) >> 2) & 1) * 320 + (l & 3) * 4, 6, vt)
    k('v_lshrrev_b32 v%d, 2, v%d' % (tm, tm))
    k('v_add3_u32 v%d, v%d, v%d, s19' % (tm + 2, tm + 2, tm))
    for i in range(4):
        wave_sel(k, 19, [64 * i, 64 * i, 64 * (i & 1), 64 * (i & 1)])
        allm = lambda l: True
        wave_mask(k, 48, [allm, allm] + [(lambda l, e=e: (g(l) == 0 and (i >> 1) == e) or (g(l) == 1 and i == 0)) for e in range(2)])
        k('v_add_u32 v%d, s19, v%d' % (vt, tm + 1))
        k('v_cndmask_b32 v%d, v%d, v%d, s[48:49]' % (vAt[i], vBIG, vt))
        k('s_lshr_b32 s19, s19, 2')
        wave_mask(k, 48, [lambda l: m(l) >> 2 == 0, lambda l: m(l) >> 2 == 1,
                          lambda l: m(l) < 8 and ((g(l) == 0 and (i >> 1) == (m(l) >> 2)) or (g(l) == 1 and i == 0)),
                          lambda l: False])
        k('v_add_u32 v%d, s19, v%d' % (vt, tm + 2))
        k('v_cndmask_b32 v%d, v%d, v%d, s[48:49]' % (vAl[i], vBIG, vt))
    lanefn(k, vQ, vlane, lambda l: g(l) * 512 + m(l) * 16, 6, vt)
    lanefn(k, vQL, vlane, lambda l: g(l) * 4 + m(l) * 16, 6, vt)
    k('s_lshl_b32 s19, s41, 16')
    k('s_lshl_b32 s40, s18, 11')
    k('s_add_u32 s19, s19, s40')
    srd(k, 56, 14, off_s=19, off_c=PHIQ_OFF, nrec=32768 + 2048)
    k('s_lshl_b32 s19, s41, 13')
    k('s_lshl_b32 s40, s18, 8')
    k('s_add_u32 s19, s19, s40')
    srd(k, 60, 14, off_s=19, off_c=PHIL_OFF, nrec=4096 + 256)
    k('s_mov_b32 s64, 32768')
    k('s_mov_b32 s65, 4096')
    k('s_lshl_b32 s19, s41, 7')
    srd(k, 68, 14, off_s=19, off_c=MEANX_OFF, nrec=128)
    k('s_cmp_eq_u32 s18, 0')
    k('s_cselect_b32 s19, 0, 0x%x' % BIG)
    k('v_lshlrev_b32 v%d, 2, v%d' % (vt, vlane))
    k('v_add_u32 v%d, s19, v%d' % (vt, vt))
    smask(k, 48, lambda l: l < 16)
    k('v_cndmask_b32 v%d, v%d, v%d, s[48:49]' % (vMXo, vBIG, vt))
    srd(k, 72, 14, off_c=WBAR_OFF, nrec=4608)
    k('s_lshl_b32 s19, s46, 3')
    k('v_mov_b32 v%d, s19' % vt)
    smask(k, 48, lambda l: l == 0)
    k('v_cndmask_b32 v%d, v%d, v%d, s[48:49]' % (vWBo, vBIG, vt))
    go = lambda l: m(l) >> 2
    lanefn(k, tm, vlane, lambda l: WP + (go(l) >> 1) * 648 + (0, 4, 2, 6)[g(l)] * 36 + (9 * (go(l) & 1) + (l & 3)) * 2, 6, vt)
    lanefn(k, tm + 1, vlane, lambda l: WP + (9 * (go(l) & 1) + (l & 3)) * 2, 6, vt)
    k('v_mov_b32 v%d, 0x%x' % (vt2, ZA))
    sel = [(tm + 2, tm, lambda l: g(l) >> 1 == go(l) >> 1), (tm + 3, tm, lambda l: g(l) >> 1 == go(l) >> 1 and l & 3 == 0),
           (tm + 4, tm + 1, lambda l: go(l) >> 1 == 0), (tm + 5, tm + 1, lambda l: go(l) >> 1 == 0 and l & 3 == 0),
           (tm + 6, tm + 1, lambda l: go(l) >> 1 == 1), (tm + 7, tm + 1, lambda l: go(l) >> 1 == 1 and l & 3 == 0)]
    for d, s, p in sel:
        smask(k, 48, p)
        k('v_cndmask_b32 v%d, v%d, v%d, s[48:49]' % (d, vt2, s))
    k.wait_vm(wp_id)
    comb = []
    nt = [acc]

    def gath(dst, addr, o0, o1):
        k('ds_read_u16 v%d, v%d offset:%d' % (dst, addr, o0))
        k('ds_read_u16 v%d, v%d offset:%d' % (nt[0], addr, o1))
        comb.append((dst, nt[0]))
        nt[0] += 1
    for u in range(3):
        for j in range(0, 8, 2):
            o = 36 * ((j % 4) + 8 * (j // 4)) + 8 * u
            gath(Am + 4 * u + j // 2, tm + 2 + (u == 2), o, o + 36)
        gath(Alq + 2 * u, tm + 4 + (u == 2), 36 * 16 + 8 * u, 36 * 17 + 8 * u)
        gath(Alq + 2 * u + 1, tm + 6 + (u == 2), 648 + 8 * u, 648 + 36 + 8 * u)
    for d, t in comb:
        k('v_lshl_or_b32 v%d, v%d, 16, v%d' % (d, t, d))
    smask(k, 48, lambda l: g(l) == 0)
    smask(k, 50, lambda l: g(l) == 1)
    for i in range(6):
        k('v_cndmask_b32 v%d, 0, v%d, s[50:51]' % (Alk + i, Alq + i))
        k('v_cndmask_b32 v%d, 0, v%d, s[48:49]' % (Alq + i, Alq + i))

    slots = [(s, t) for s in range(18) for t in range(8)]
    N = len(slots)
    sc = Sched(N)
    D = 5
    bpos = {c: max(0, 16 * c - 3) for c in range(9)}

    def barrier(c):
        def fn():
            k.wait_lg0()
            k.wait_vm(dma_last[c])
            k('s_barrier')
            if c == 4:
                k('buffer_store_dword v%d, v%d, s[20:23], 0 offen sc0 sc1' % (vTk, vZ2))
        return fn
    for c in range(9):
        sc.at(bpos[c], barrier(c))
    for c in range(5):
        sc.at(bpos[c + 1] + 3, (lambda cc_: (lambda: dma(cc_)))(c + 4))
    na = 0
    aidx = {}
    for n, (s, t) in enumerate(slots):
        c, ks = s // 2, s % 2
        if t == 0:
            p = max(n - D, bpos[c])
            for tau in range(2):
                sc.at(p, I(k, 'ds_read_b128 %s, v%d offset:%d' % (ar(aB + 8 * (s % NBK) + 4 * tau, 4), vXB[ks], (c % 4) * 16384 + 2048 * tau)))
        if t < 7:
            p = max(n - D, bpos[c])
            r = aA + 4 * (na % RA)
            aidx[n] = r
            na += 1
            off = (c % 4) * WSL + 32 * ks * 240 + ((t // 2) * 80 + 16 * (t % 2) if t < 6 else 0)
            base = vWA if t < 6 else vWL
            sc.at(p, I(k, 'ds_read_b64_tr_b16 %s, v%d offset:%d' % (ar(r, 2), base, off)))
            sc.at(p, I(k, 'ds_read_b64_tr_b16 %s, v%d offset:%d' % (ar(r + 2, 2), base, off + 4 * 240)))
    wb = [I(k, 'v_mfma_f32_16x16x32_bf16 %s, %s, %s, 0' % (vr(wacc, 4), vr(ones, 4), vr(wrow, 4))),
          I(k, 'v_mfma_f32_16x16x32_bf16 %s, %s, %s, %s' % (vr(wacc, 4), vr(ones, 4), vr(wrow + 4, 4), vr(wacc, 4)))]
    sc.at(60, wb[0]); sc.at(60, wb[1])
    wb = []
    for sh in (8, 4, 2, 1):
        wb.append(I(k, 'v_add_f32_dpp v%d, v%d, v%d row_ror:%d row_mask:0xf bank_mask:0xf' % (wacc, wacc, wacc, sh)))
    wb.append(I(k, 'v_mul_f32 v%d, %s, v%d' % (wacc, f32(1.0 / 576), wacc)))
    wb.append(I(k, 'v_cvt_pk_bf16_f32 v%d, v%d, v%d' % (wacc + 1, wacc, wacc)))
    wb.append(I(k, 'v_and_b32 v%d, 0xffff0000, v%d' % (wacc + 1, wacc + 1)))
    wb.append(I(k, 'v_sub_f32 v%d, v%d, v%d' % (wacc + 2, wacc, wacc + 1)))
    wb.append(I(k, 'v_cvt_pk_bf16_f32 v%d, v%d, v%d' % (wacc, wacc + 1, wacc + 2)))
    wb.append(I(k, 'v_mov_b32 v%d, 0' % (wacc + 1)))
    wb.append(I(k, 'buffer_store_dwordx2 %s, v%d, s[72:75], 0 offen' % (vr(wacc, 2), vWBo)))
    sc.spread(64, 76, wb)

    def slot(n):
        s, t = slots[n]
        B = [ar(aB + 8 * (s % NBK) + 4 * tau, 4) for tau in range(2)]
        if t < 7:
            A = ar(aidx[n], 4)
            for tau in range(2):
                a = vr(acc + 8 * t + 4 * tau, 4)
                k('v_mfma_f32_16x16x32_bf16 %s, %s, %s, %s' % (a, A, B[tau], a if s else '0'))
            a = vr(cs + 4 * t, 4)
            k('v_mfma_f32_16x16x32_bf16 %s, %s, %s, %s' % (a, A, vr(ones, 4), a if s else '0'))
        else:
            for tau in range(2):
                a = vr(aS + 4 * tau, 4)
                k('v_mfma_f32_16x16x32_bf16 %s, %s, %s, %s' % (a, vr(ones, 4), B[tau], a if s else '0'))
                a = vr(aG + 4 * tau, 4)
                k('v_mfma_f32_16x16x32_bf16 %s, %s, %s, %s' % (a, B[tau], B[tau], a if s else '0'))
    sc.run(slot)

    k('buffer_load_dword v%d, v%d, s[20:23], 0 offen sc0 sc1' % (vZo, vFl))
    for i in range(1, 4):
        smask(k, 76 + 2 * i, lambda l: l & 3 == i)
    smask(k, 76, lambda l: g(l) == m(l) >> 2)
    smask(k, 84, lambda l: g(l) == 2)
    smask(k, 86, lambda l: g(l) == 3)
    for tau in range(2):
        G = aG + 4 * tau
        for i in range(1, 4):
            k('v_cndmask_b32 v%d, v%d, v%d, s[%d:%d]' % (G, G, G + i, 76 + 2 * i, 77 + 2 * i))
        k('v_cndmask_b32 v%d, 0, v%d, s[76:77]' % (G, G))
        k('v_mul_f32 v%d, %s, v%d' % (vmean + tau, f32(-1.0 / 576), aS + 4 * tau))
        k('v_mov_b32 v%d, v%d' % (G + 1, G))
    for tau in range(2):
        G = aG + 4 * tau
        k('v_permlane16_swap_b32 v%d, v%d' % (G + 1, G))
        k('v_add_f32 v%d, v%d, v%d' % (G, G, G + 1))
        k('v_mov_b32 v%d, v%d' % (G + 1, G))
    for tau in range(2):
        G = aG + 4 * tau
        k('v_permlane32_swap_b32 v%d, v%d' % (G + 1, G))
        k('v_add_f32 v%d, v%d, v%d' % (G, G, G + 1))
        k('v_mul_f32 v%d, v%d, v%d' % (G + 1, vmean + tau, vmean + tau))
        k('v_mul_f32 v%d, %s, v%d' % (G, f32(1.0 / 576), G))
        k('v_sub_f32 v%d, v%d, v%d' % (G, G, G + 1))
        k('v_add_f32 v%d, %s, v%d' % (G, f32(1e-5), G))
        k('v_rsq_f32 v%d, v%d' % (vrstd + tau, G))
        k('v_sub_f32 v%d, 0, v%d' % (G + 2, vmean + tau))
        k('v_mul_f32 v%d, %s, v%d' % (vc + tau, f32(LOG2E), vrstd + tau))
        k('v_cndmask_b32 v%d, 1.0, v%d, s[84:85]' % (vsL + tau, vrstd + tau))
        k('buffer_store_dword v%d, v%d, s[68:71], 0 offen offset:%d' % (G + 2, vMXo, 64 * tau))

    def fix(t, tau, dst, scale=None):
        a = acc + 8 * t + 4 * tau
        for i in range(4):
            k('v_fmac_f32 v%d, v%d, v%d' % (a + i, cs + 4 * t + i, vmean + tau))
        if scale is not None:
            for i in range(4):
                k('v_mul_f32 v%d, v%d, v%d' % (a + i, a + i, scale))
        k('v_cvt_pk_bf16_f32 v%d, v%d, v%d' % (dst, a, a + 1))
        k('v_cvt_pk_bf16_f32 v%d, v%d, v%d' % (dst + 1, a + 2, a + 3))

    def phimm(P, B, Al, tau):
        for u in range(3):
            p = vr(P + 12 * tau + 4 * u, 4)
            k('v_mfma_f32_16x16x32_bf16 %s, %s, %s, 0' % (p, vr(Am + 4 * u, 4), vr(B + 4 * tau, 4)))
        for u in range(3):
            p = vr(P + 12 * tau + 4 * u, 4)
            k('v_mfma_f32_16x16x16_bf16 %s, %s, %s, %s' % (p, vr(Al + 2 * u, 2), vr(BL + 2 * tau, 2), p))

    for tau in range(2):
        fix(6, tau, BL + 2 * tau, vsL + tau)
        fix(2, tau, Bk + 4 * tau)
        fix(3, tau, Bk + 4 * tau + 2)
        phimm(Pk, Bk, Alk, tau)
    for tau in range(2):
        fix(4, tau, Bv + 4 * tau, vrstd + tau)
        fix(5, tau, Bv + 4 * tau + 2, vrstd + tau)
        k('ds_write_b128 v%d, %s offset:%d' % (vPv, vr(Bv + 4 * tau, 4), 3584 * tau))
        k('v_mov_b32 v%d, 0x3f80' % vt)
        k('v_cndmask_b32 v%d, v%d, v%d, s[86:87]' % (tm, BL + 2 * tau, vt))
        k('v_cndmask_b32 v%d, v%d, 0, s[86:87]' % (tm + 1, BL + 2 * tau + 1))
        k('s_mov_b32 exec_lo, 0')
        k('ds_write_b64 v%d, %s offset:%d' % (vPg, vr(tm, 2), 3584 * tau))
        k('s_mov_b32 exec_lo, -1')
    for tau in range(2):
        fix(0, tau, Bq + 4 * tau)
        fix(1, tau, Bq + 4 * tau + 2)
    for tau in range(2):
        phimm(Pq, Bq, Alq, tau)

    def softmax(P, tau):
        p = [P + 12 * tau + i for i in range(9)]
        en = [tm + i for i in range(9)]
        mx, mn, t1, t2 = tm + 9, tm + 10, tm + 11, tm + 12
        c = vc + tau
        L = []
        A = lambda s: L.append(I(k, s))
        A('v_max3_f32 v%d, v%d, v%d, v%d' % (mx, p[0], p[1], p[2]))
        A('v_min3_f32 v%d, v%d, v%d, v%d' % (mn, p[0], p[1], p[2]))
        for i in (3, 5, 7):
            A('v_max3_f32 v%d, v%d, v%d, v%d' % (mx, mx, p[i], p[i + 1]))
            A('v_min3_f32 v%d, v%d, v%d, v%d' % (mn, mn, p[i], p[i + 1]))
        A('v_mov_b32 v%d, v%d' % (t1, mx))
        A('v_mov_b32 v%d, v%d' % (t2, mn))
        A('v_permlane16_swap_b32 v%d, v%d' % (t1, mx))
        A('v_permlane16_swap_b32 v%d, v%d' % (t2, mn))
        A('v_max_f32 v%d, v%d, v%d' % (mx, mx, t1))
        A('v_min_f32 v%d, v%d, v%d' % (mn, mn, t2))
        A('v_mul_f32 v%d, v%d, v%d' % (mx, mx, c))
        A('v_mul_f32 v%d, v%d, v%d' % (mn, mn, c))
        for i in range(9):
            A('v_fma_f32 v%d, -v%d, v%d, v%d' % (en[i], p[i], c, mn))
            A('v_fma_f32 v%d, v%d, v%d, -v%d' % (p[i], p[i], c, mx))
        for i in range(9):
            A('v_exp_f32 v%d, v%d' % (en[i], en[i]))
            A('v_exp_f32 v%d, v%d' % (p[i], p[i]))
        A('v_add_f32 v%d, v%d, v%d' % (mn, en[0], en[1]))
        A('v_add_f32 v%d, v%d, v%d' % (mx, p[0], p[1]))
        for i in range(2, 9):
            A('v_add_f32 v%d, v%d, v%d' % (mn, mn, en[i]))
            A('v_add_f32 v%d, v%d, v%d' % (mx, mx, p[i]))
        A('v_mov_b32 v%d, v%d' % (t1, mx))
        A('v_mov_b32 v%d, v%d' % (t2, mn))
        A('v_permlane16_swap_b32 v%d, v%d' % (t1, mx))
        A('v_permlane16_swap_b32 v%d, v%d' % (t2, mn))
        A('v_add_f32 v%d, v%d, v%d' % (mx, mx, t1))
        A('v_add_f32 v%d, v%d, v%d' % (mn, mn, t2))
        A('v_rcp_f32 v%d, v%d' % (mx, mx))
        A('v_rcp_f32 v%d, v%d' % (mn, mn))
        for i in range(9):
            A('v_mul_f32 v%d, v%d, v%d' % (p[i], p[i], mx))
            A('v_mul_f32 v%d, v%d, v%d' % (en[i], en[i], mn))
        A('v_cvt_pk_bf16_f32 v%d, v%d, v%d' % (p[8], p[8], en[8]))
        for i in range(4):
            A('v_cvt_pk_bf16_f32 v%d, v%d, v%d' % (p[i], p[2 * i], p[2 * i + 1]))
        for i in range(4):
            A('v_cvt_pk_bf16_f32 v%d, v%d, v%d' % (p[4 + i], en[2 * i], en[2 * i + 1]))
        return L

    for tau in range(2):
        for fn in softmax(Pk, tau):
            fn()
        p = Pk + 12 * tau
        k('ds_write_b128 v%d, %s offset:%d' % (vPm, vr(p, 4), 3584 * tau))
        k('ds_write_b128 v%d, %s offset:%d' % (vPm, vr(p + 4, 4), 3584 * tau + 16))
        k('ds_write_b32 v%d, v%d offset:%d' % (vPl, p + 8, 3584 * tau))
    k.wait_lg0()
    k('s_barrier')
    for ka in range(4):
        for e in range(2):
            k('ds_read_b64_tr_b16 %s, v%d offset:%d' % (ar(aKA + 4 * ka + 2 * e, 2), vKA, 7168 * ka + 3584 * e))
        for u in range(3):
            for e in range(2):
                k('ds_read_b64_tr_b16 %s, v%d offset:%d' % (ar(aKB + 12 * ka + 4 * u + 2 * e, 2), vKB if u < 2 else vKL, 7168 * ka + 3584 * e + (32 * u if u < 2 else 0)))

    def qstore(tau):
        p = Pq + 12 * tau
        so = '0' if tau == 0 else 's64'
        k('buffer_store_dwordx4 %s, v%d, s[56:59], %s offen' % (vr(p, 4), vQ, so))
        k('buffer_store_dwordx4 %s, v%d, s[56:59], %s offen offset:256' % (vr(p + 4, 4), vQ, so))
        k('buffer_store_dword v%d, v%d, s[60:63], %s offen' % (p + 8, vQL, '0' if tau == 0 else 's65'))
    L = softmax(Pq, 0)
    for fn in L[:30]:
        fn()
    mm = []
    for ka in range(4):
        for u in range(3):
            a = vr(kvacc + 4 * u, 4)
            mm.append(I(k, 'v_mfma_f32_16x16x32_bf16 %s, %s, %s, %s' % (a, ar(aKA + 4 * ka, 4), ar(aKB + 12 * ka + 4 * u, 4), a if ka else '0')))
    rest = L[30:]
    for i, fn in enumerate(mm):
        fn()
        for f2 in rest[3 * i:3 * i + 3]:
            f2()
    rest = rest[36:]
    for fn in rest[:12]:
        fn()
    k('v_readfirstlane_b32 s19, v%d' % vZo)
    k('s_cmp_lg_u32 s19, 0')
    k('s_cbranch_scc1 k1_go')
    k.label('k1_spin')
    k.auto = False
    k('s_sleep 2')
    k('buffer_load_dword v%d, v%d, s[20:23], 0 offen sc0 sc1' % (vZo, vFl))
    k('s_waitcnt vmcnt(0)')
    k('v_readfirstlane_b32 s19, v%d' % vZo)
    k('s_nop 3')
    k('s_cmp_lg_u32 s19, 0')
    k('s_cbranch_scc0 k1_spin')
    k.vm.pop()
    k.auto = True
    k.label('k1_go')
    for u in range(3):
        for i in range(4):
            if u < 2:
                k('buffer_atomic_add_f32 v%d, v%d, s[52:55], 0 offen offset:%d sc1' % (kvacc + 4 * u + i, vAt[i], 1280 * u))
            else:
                k('buffer_atomic_add_f32 v%d, v%d, s[52:55], 0 offen sc1' % (kvacc + 8 + i, vAl[i]))
    for fn in rest[12:]:
        fn()
    qstore(0)
    for fn in softmax(Pq, 1):
        fn()
    qstore(1)
    k.label('k1_end')
    k('s_endpgm')
    return k, '; @launch kernel=k1_kernel grid=(256,1,1) block=(256,1,1) lds=%d' % (WP + 2048), 256
```

```python
from common import *


def k2():
    k = Kern('k2_kernel')
    V = Alloc(1, 256)
    vt = V(); vlane = V(); vL16 = V(); vT16 = V(); vT8 = V()
    vD = [V() for _ in range(4)]
    vA1 = V(); vA2 = [V() for _ in range(4)]; vAL1 = V(); vAL2 = V()
    vMk = [V() for _ in range(4)]
    vW = [V(), V()]; vW4 = [V(), V()]; vWL = [V(), V()]; vWL4 = [V(), V()]
    vWBo = V(); vWBl = V()
    vX = V(); vH = V(); vH4 = V(); vHC = V(); vHC4 = V(); vSS = V(); vMX = V(); vmean = V(); vr_ = [V(), V(), V()]
    vwb = V(6, 2)
    vx = V(10, 2)
    vBl = V(6, 2)
    vPL = V(16, 4)
    vM = V(24, 4)
    vLq = V(16, 4)
    acc = V(20, 4)
    stg = V(92, 4)
    Bo = stg
    aP = 0; aA = 128; aAL = 160; aW = 192
    WO = 47104
    k('s_cmp_ge_u32 s2, 256')
    k('s_cbranch_scc1 k2_end')
    k('s_load_dwordx2 s[4:5], s[0:1], 0')
    k('s_load_dwordx2 s[6:7], s[0:1], 24')
    k('s_load_dwordx2 s[36:37], s[0:1], 80')
    k('v_lshrrev_b32 v%d, 6, v0' % vt)
    k('v_and_b32 v%d, 63, v0' % vlane)
    k('v_readfirstlane_b32 s3, v%d' % vt)
    k('v_lshlrev_b32 v%d, 4, v0' % vT16)
    k('v_lshlrev_b32 v%d, 3, v0' % vT8)
    k('v_lshlrev_b32 v%d, 4, v%d' % (vL16, vlane))
    k('s_and_b32 s38, s2, 7')
    k('s_lshr_b32 s39, s2, 3')
    k('s_and_b32 s40, s39, 7')
    k('s_lshr_b32 s39, s39, 3')
    k('s_lshl_b32 s39, s39, 3')
    k('s_add_u32 s39, s39, s38')
    k('s_lshl_b32 s39, s39, 2')
    k('s_add_u32 s39, s39, s3')
    srd(k, 8, 36, off_c=KV_OFF, nrec=KV_BYTES)
    k('s_mov_b32 s41, 0')
    for i in range(23):
        k('buffer_load_dwordx4 %s, v%d, s[8:11], s41 offen' % (vr(stg + 4 * i, 4), vT16))
        if i < 22:
            k('s_add_u32 s41, s41, 4096')
    srd(k, 12, 36, off_c=WBAR_OFF, nrec=4608)
    k('s_mul_i32 s42, s3, 144')
    k('v_add_u32 v%d, s42, v%d' % (vt, vlane))
    k('v_lshlrev_b32 v%d, 3, v%d' % (vWBo, vt))
    k('v_mul_u32_u24 v%d, 0xa0, v%d' % (vWBl, vt))
    k('v_add_u32 v%d, 0x%x, v%d' % (vWBl, WO + 144, vWBl))
    for i in range(3):
        k('buffer_load_dwordx2 %s, v%d, s[12:15], 0 offen offset:%d' % (vr(vwb + 2 * i, 2), vWBo, 512 * i))
    k('v_mul_u32_u24 v%d, 0x%x, v%d' % (vt, 6554, vlane))
    k('v_lshrrev_b32 v%d, 16, v%d' % (vt, vt))
    k('v_mul_u32_u24 v%d, 10, v%d' % (vD[1], vt))
    k('v_sub_u32 v%d, v%d, v%d' % (vD[1], vlane, vD[1]))
    k('v_mul_u32_u24 v%d, 0x480, v%d' % (vD[0], vt))
    k('v_lshl_add_u32 v%d, v%d, 4, v%d' % (vD[0], vD[1], vD[0]))
    k('s_mul_i32 s42, s3, %d' % (24 * 1152))
    k('v_add_u32 v%d, s42, v%d' % (vD[0], vD[0]))
    for i in range(1, 4):
        k('v_add_u32 v%d, 0x%x, v%d' % (vD[i], i * (6912 - 960), vD[0]))
    k('s_mul_i32 s42, s40, 144')
    k('s_sub_u32 s43, %d, s42' % (576 * 1152))
    srd(k, 16, 6, off_s=42, nrec_s=43)
    k('s_mul_i32 s44, s3, %d' % (24 * 160))
    k('s_add_u32 s44, s44, %d' % WO)
    k('s_mov_b32 s45, 0')
    k('s_lshl_b32 s42, s39, 15')
    srd(k, 20, 36, off_s=42, off_c=PHIQ_OFF, nrec=32768)
    k('s_lshl_b32 s42, s39, 12')
    srd(k, 24, 36, off_s=42, off_c=PHIL_OFF, nrec=4096)
    k('s_mov_b32 s46, 0')
    dma_last = {}

    def dma(y):
        k('s_add_u32 m0, s44, %d' % (96 * 160 * y))
        set_exec(k, lambda l: l < 60 and l % 10 != 9)
        for i in range(4):
            dma_last[y] = k('buffer_load_dwordx4 v%d, s[16:19], s45 offen offset:%d lds' % (vD[i], 960 * i))
        k('s_mov_b64 exec, -1')
        k('s_add_u32 s45, s45, %d' % (96 * 1152))

    def phi(P):
        if P % 4 == 0:
            k('buffer_load_dwordx4 %s, v%d, s[24:27], 0 offen offset:%d' % (vr(vPL + P, 4), vL16, 1024 * (P // 4)))
        for e in range(2):
            k('buffer_load_dwordx4 %s, v%d, s[20:23], s46 offen offset:%d' % (ar(aP + 8 * P + 4 * e, 4), vL16, 2048 * (P % 2) + 1024 * e))
        if P % 2 == 1:
            k('s_add_u32 s46, s46, 4096')
    stage_pairs = [[0, 1], [2, 3, 4], [5, 6, 7], [8, 9], [10, 11, 12], [13, 14, 15]]

    def stage(y):
        for P in stage_pairs[y]:
            phi(P)
        dma(y)
    for y in range(3):
        stage(y)
    g = lambda l: l >> 4
    m = lambda l: l & 15
    lanefn(k, vA1, vlane, lambda l: (g(l) >> 1) * 640 + m(l) * 32 + (g(l) & 1) * 16, 6, vt)
    lanefn(k, vX, vlane, lambda l: (g(l) >> 1) * 640 + (g(l) & 1) * 16 + 19 * 32, 6, vt)
    smask(k, 48, lambda l: m(l) % 4 == 0)
    k('v_subrev_u32 v%d, 32, v%d' % (vt, vX))
    k('v_cndmask_b32 v%d, v%d, v%d, s[48:49]' % (vX, vX, vt))
    lanefn(k, vH, vlane, lambda l: (g(l) >> 1) * 640 + (g(l) & 1) * 16 + (15 + (l & 3)) * 32, 6, vt)
    for q in range(4):
        smask(k, 48, lambda l: m(l) % 4 in (1, 2) and m(l) // 4 == q)
        k('v_cndmask_b32 v%d, v%d, v%d, s[48:49]' % (vA2[q], vX, vH))
        smask(k, 50, lambda l: g(l) == q)
        k('v_cndmask_b32 v%d, 0, -1, s[50:51]' % vMk[q])
    LB = 40960
    lanefn(k, vAL1, vlane, lambda l: LB + g(l) * 320 + m(l) * 8, 6, vt)
    lanefn(k, vX, vlane, lambda l: LB + g(l) * 320 + 19 * 8, 6, vt)
    smask(k, 48, lambda l: m(l) % 4 == 0)
    k('v_subrev_u32 v%d, 8, v%d' % (vt, vX))
    k('v_cndmask_b32 v%d, v%d, v%d, s[48:49]' % (vX, vX, vt))
    lanefn(k, vH, vlane, lambda l: LB + g(l) * 320 + (15 + (l & 3)) * 8, 6, vt)
    smask(k, 48, lambda l: m(l) % 4 in (1, 2) and m(l) // 4 == g(l))
    k('v_cndmask_b32 v%d, v%d, v%d, s[48:49]' % (vAL2, vX, vH))
    r_ = lambda l: (l >> 2) & 3
    cc = lambda l: l & 3
    lanefn(k, vW[0], vlane, lambda l: WO + (4 * g(l) + r_(l)) * 160 + 8 * cc(l), 6, vt)
    lanefn(k, vW4[0], vlane, lambda l: WO + (4 * g(l) + r_(l)) * 160 + (128, 136, 144, 144)[cc(l)], 6, vt)
    lanefn(k, vWL[0], vlane, lambda l: WO + (36 * g(l) + 16 + r_(l)) * 160 + 8 * cc(l), 6, vt)
    lanefn(k, vWL4[0], vlane, lambda l: WO + (36 * g(l) + 16 + r_(l)) * 160 + (128, 136, 144, 144)[cc(l)], 6, vt)
    for a in (vW, vW4, vWL, vWL4):
        k('v_add_u32 v%d, 0x%x, v%d' % (a[1], 46080, a[0]))
    k('s_mul_i32 s42, s39, %d' % (16 * 1152))
    k('s_mul_i32 s43, s40, 144')
    k('s_add_u32 s42, s42, s43')
    k('s_sub_u32 s43, %d, s42' % (2048 * 1152))
    srd(k, 28, 4, off_s=42, nrec_s=43)
    lanefn(k, vX, vlane, lambda l: m(l) * 1152 + 8 * g(l), 6, vt)
    for t in range(5):
        k('buffer_load_dwordx2 %s, v%d, s[28:31], 0 offen offset:%d' % (vr(vx + 2 * t, 2), vX, 32 * t))
    k('s_lshl_b32 s42, s39, 6')
    srd(k, 32, 36, off_s=42, off_c=MEANX_OFF, nrec=64)
    lanefn(k, vMX, vlane, lambda l: m(l) * 4, 6, vt)
    k('buffer_load_dword v%d, v%d, s[32:35], 0 offen' % (vMX, vMX))
    for i in range(23):
        b = stg + 4 * i
        k('v_cvt_pk_bf16_f32 v%d, v%d, v%d' % (b, b, b + 1))
        k('v_cvt_pk_bf16_f32 v%d, v%d, v%d' % (b + 1, b + 2, b + 3))
        k('ds_write_b64 v%d, %s offset:%d' % (vT8, vr(b, 2), 2048 * i))
        if i in (8, 14, 20):
            stage(3 + (i - 8) // 6)
    for i in range(3):
        if i == 2:
            k('s_mov_b64 exec, 0xffff')
        k('ds_write_b64 v%d, %s offset:%d' % (vWBl, vr(vwb + 2 * i, 2), 64 * 160 * i))
        if i == 2:
            k('s_mov_b64 exec, -1')
    k('s_lshr_b32 s42, s39, 1')
    k('s_mul_i32 s42, s42, 36864')
    k('s_and_b32 s43, s39, 1')
    k('s_mul_i32 s47, s40, 4608')
    k('s_add_u32 s42, s42, s47')
    k('s_lshl_b32 s47, s43, 3')
    k('s_add_u32 s47, s47, s42')
    srd(k, 8, 36, off_s=47, off_c=H_OFF, nrec=4608)
    k('s_lshl_b32 s47, s43, 8')
    k('s_add_u32 s47, s47, s42')
    srd(k, 12, 36, off_s=47, off_c=HC_OFF, nrec=4608)
    k('s_lshl_b32 s42, s39, 9')
    k('s_lshl_b32 s43, s40, 2')
    k('s_add_u32 s42, s42, s43')
    srd(k, 52, 36, off_s=42, off_c=SSQ_OFF, nrec=512)
    k('v_mov_b32 v%d, 0x%x' % (vWBo, BIG))
    k('v_mov_b32 v%d, v%d' % (vH, vL16))
    k('v_add_u32 v%d, 0x1000, v%d' % (vt, vL16))
    smask(k, 48, lambda l: g(l) < 2)
    k('v_cndmask_b32 v%d, v%d, v%d, s[48:49]' % (vH4, vWBo, vt))
    smask(k, 50, lambda l: g(l) == 0)
    k('v_cndmask_b32 v%d, v%d, v%d, s[50:51]' % (vHC4, vWBo, vt))
    k('v_lshlrev_b32 v%d, 5, v%d' % (vt, vlane))
    k('v_cndmask_b32 v%d, v%d, v%d, s[50:51]' % (vSS, vWBo, vt))
    lanefn(k, vHC, vlane, lambda l: (2 * (g(l) & 1) + (g(l) >> 1)) * 512 + m(l) * 16, 6, vt)
    k.wait_lg0()
    k('s_barrier')
    for blk in range(4):
        for e in range(2):
            b = aAL + 8 * blk + 4 * e
            k('ds_read_b64 %s, v%d offset:%d' % (ar(b, 2), vAL1, 1280 * blk + 160 * e))
            k('ds_read_b64 %s, v%d offset:%d' % (ar(b + 2, 2), vAL2, 1280 * blk + 160 * e))

    slots = []
    for P in range(16):
        for e in range(2):
            slots += [('o', 2 * P + e, j) for j in range(4)]
        if P >= 1:
            slots += [('g', P - 1, t) for t in range(5)]
        if P == 9:
            slots += [('g', 16, t) for t in range(5)]
    slots += [('g', 15, t) for t in range(5)] + [('g', 17, t) for t in range(5)]
    N = len(slots)
    pos = {s: n for n, s in enumerate(slots)}
    sc = Sched(N)
    stage_of = {P: y for y, ps in enumerate(stage_pairs) for P in ps}
    stage_of[16] = 2
    stage_of[17] = 5
    bpos = {}
    gl = [s for s in slots if s[0] == 'g']
    for s in gl:
        y = stage_of[s[1]]
        if y not in bpos:
            bpos[y] = max(0, pos[s] - 6)

            def fn(y=y):
                k.wait_vm(dma_last[y])
                k('s_barrier')
            sc.at(bpos[y], fn)
    for h in range(32):
        b = aA + 8 * (h % 4)
        p = pos[('o', h, 0)] - (16 if h >= 2 else 100)
        sc.at(p, I(k, 'ds_read_b128 %s, v%d offset:%d' % (ar(b, 4), vA1, 1280 * h)))
        sc.at(p, I(k, 'ds_read_b128 %s, v%d offset:%d' % (ar(b + 4, 4), vA2[(h // 2) % 4], 1280 * h)))
        P, e = h // 2, h % 2
        bl = vBl + 2 * (h % 3)
        p = pos[('o', h, 0)]
        sc.at(p, I(k, 'v_and_b32 v%d, v%d, v%d' % (bl, vPL + 4 * (P // 4) + 2 * e, vMk[P % 4])))
        sc.at(p, I(k, 'v_and_b32 v%d, v%d, v%d' % (bl + 1, vPL + 4 * (P // 4) + 2 * e + 1, vMk[P % 4])))
        M1 = vM + 8 * (h % 3)
        M2 = M1 + 4
        rr = vr_[h % 3]
        lq = vLq + 8 * (P // 8) + 4 * ((P // 4) % 2) + 2 * e
        e_ = [I(k, 'v_add_f32 v%d, %s, v%d' % (rr, f32(1e-6), M2)),
              I(k, 'v_rcp_f32 v%d, v%d' % (rr, rr))]
        for i in range(4):
            e_.append(I(k, 'v_mul_f32 v%d, v%d, v%d' % (M1 + i, M1 + i, rr)))
        for i in range(2):
            if P % 4 == 0:
                e_.append(I(k, 'v_mul_f32 v%d, v%d, v%d' % (lq + i, M2 + 1 + i, rr)))
            else:
                e_.append(I(k, 'v_fmac_f32 v%d, v%d, v%d' % (lq + i, M2 + 1 + i, rr)))
        e_.append(I(k, 'v_cvt_pk_bf16_f32 v%d, v%d, v%d' % (Bo + 4 * P + 2 * e, M1, M1 + 1)))
        e_.append(I(k, 'v_cvt_pk_bf16_f32 v%d, v%d, v%d' % (Bo + 4 * P + 2 * e + 1, M1 + 2, M1 + 3)))
        if h in (15, 31):
            Q = h // 16
            for i in range(4):
                e_.append(I(k, 'v_cvt_pk_bf16_f32 v%d, v%d, v%d' % (Bo + 64 + 4 * Q + i, vLq + 8 * Q + 2 * i, vLq + 8 * Q + 2 * i + 1)))
        p0 = pos[('o', h, 3)] + 3
        if h == 31:
            for fn in e_:
                sc.at(p0, fn)
        else:
            sc.spread(p0, p0 + 4, e_)
    for n, s in enumerate(gl):
        _, ks, t = s
        r = aW + 4 * (n % 8)
        if ks < 16:
            base = (vW if t < 4 else vW4)[ks // 8]
            o1 = 36 * (ks % 8) * 160 + (32 * t if t < 4 else 0)
            o2 = o1 + 20 * 160
        else:
            base = (vWL if t < 4 else vWL4)[ks - 16]
            o1 = (32 * t if t < 4 else 0)
            o2 = o1 + 144 * 160
        p = max(pos[s] - 6, bpos[stage_of[ks]])
        sc.at(p, I(k, 'ds_read_b64_tr_b16 %s, v%d offset:%d' % (ar(r, 2), base, o1)))
        sc.at(p, I(k, 'ds_read_b64_tr_b16 %s, v%d offset:%d' % (ar(r + 2, 2), base, o2)))
    gidx = {s: n for n, s in enumerate(gl)}

    def slot(n):
        s = slots[n]
        if s[0] == 'o':
            _, h, j = s
            P, e = h // 2, h % 2
            M = vr(vM + 8 * (h % 3) + 4 * (j % 2), 4)
            if j < 2:
                k('v_mfma_f32_16x16x32_bf16 %s, %s, %s, 0' % (M, ar(aA + 8 * (h % 4) + 4 * j, 4), ar(aP + 4 * h, 4)))
            else:
                k('v_mfma_f32_16x16x16_bf16 %s, %s, %s, %s' % (M, ar(aAL + 8 * (P // 4) + 4 * e + 2 * (j - 2), 2), vr(vBl + 2 * (h % 3), 2), M))
        else:
            _, ks, t = s
            a = vr(acc + 4 * t, 4)
            k('v_mfma_f32_16x16x32_bf16 %s, %s, %s, %s' % (a, ar(aW + 4 * (gidx[s] % 8), 4), vr(Bo + 4 * ks, 4), '0' if ks == 0 else a))
    sc.run(slot)
    T4 = acc + 16
    k('v_add_f32 v%d, v%d, v%d' % (vmean, T4, T4 + 1))
    k('v_mov_b32 v%d, v%d' % (vt, vmean))
    k('v_permlane32_swap_b32 v%d, v%d' % (vt, vmean))
    k('v_add_f32 v%d, v%d, v%d' % (vmean, vmean, vMX))
    hq = vM
    cq = vM + 12
    ss = vr_[0]
    for t in range(5):
        for i in range(4):
            a = acc + 4 * t + i
            src = vx + 2 * t + i // 2
            if i % 2 == 0:
                k('v_lshlrev_b32 v%d, 16, v%d' % (vt, src))
            else:
                k('v_and_b32 v%d, 0xffff0000, v%d' % (vt, src))
            k('v_add_f32 v%d, v%d, v%d' % (a, a, vt))
        a = acc + 4 * t
        k('v_cvt_pk_bf16_f32 v%d, v%d, v%d' % (hq + 2 * t, a, a + 1))
        k('v_cvt_pk_bf16_f32 v%d, v%d, v%d' % (hq + 2 * t + 1, a + 2, a + 3))
        k('buffer_store_dwordx2 %s, v%d, s[8:11], 0 offen offset:%d' % (vr(hq + 2 * t, 2), vH if t < 4 else vH4, 1024 * (t % 4)))
        for i in range(4):
            k('v_sub_f32 v%d, v%d, v%d' % (a + i, a + i, vmean))
        k('v_cvt_pk_bf16_f32 v%d, v%d, v%d' % (cq + 2 * t, a, a + 1))
        k('v_cvt_pk_bf16_f32 v%d, v%d, v%d' % (cq + 2 * t + 1, a + 2, a + 3))
        if t == 4:
            k('v_mov_b32 v%d, v%d' % (cq + 10, cq + 8))
            k('v_mov_b32 v%d, v%d' % (cq + 11, cq + 9))
        if t % 2 == 1 or t == 4:
            b = cq + 4 * (t // 2)
            k('v_permlane16_swap_b32 v%d, v%d' % (b, b + 2))
            k('v_permlane16_swap_b32 v%d, v%d' % (b + 1, b + 3))
            k('buffer_store_dwordx4 %s, v%d, s[12:15], 0 offen offset:%d' % (vr(b, 4), vHC if t < 4 else vHC4, 2048 * (t // 2) if t < 4 else 0))
        tgt = ss if t < 4 else vr_[1]
        for i in range(4):
            if i == 0 and t in (0, 4):
                k('v_mul_f32 v%d, v%d, v%d' % (tgt, a, a))
            else:
                k('v_fmac_f32 v%d, v%d, v%d' % (tgt, a + i, a + i))
    k('v_cndmask_b32 v%d, 0, v%d, s[48:49]' % (vr_[1], vr_[1]))
    k('v_add_f32 v%d, v%d, v%d' % (ss, ss, vr_[1]))
    k('v_mov_b32 v%d, v%d' % (vt, ss))
    k('v_permlane16_swap_b32 v%d, v%d' % (vt, ss))
    k('v_add_f32 v%d, v%d, v%d' % (ss, ss, vt))
    k('v_mov_b32 v%d, v%d' % (vt, ss))
    k('v_permlane32_swap_b32 v%d, v%d' % (vt, ss))
    k('v_add_f32 v%d, v%d, v%d' % (ss, ss, vt))
    k('buffer_store_dword v%d, v%d, s[52:55], 0 offen' % (ss, vSS))
    k.label('k2_end')
    k('s_endpgm')
    return k, '; @launch kernel=k2_kernel grid=(256,1,1) block=(256,1,1) lds=%d' % (WO + 92160), 256
```

```python
from common import *


def k3(st_flags=''):
    k = Kern('k3_kernel')
    V = Alloc(1, 168)
    vt = V(); vlane = V(); vA = [V(), V()]; vD = [V() for _ in range(5)]; vL16 = V(); vc1 = V(); vc2 = V(); vHH = V()
    vs = V(8, 2)
    acc = 24
    RA = 8; aA = 0; NB = 14; aB = 32
    SLOT = 37120
    k('s_cmp_ge_u32 s2, 256')
    k('s_cbranch_scc1 k3_end')
    k('s_load_dwordx4 s[4:7], s[0:1], 40')
    k('s_load_dwordx2 s[24:25], s[0:1], 80')
    k('v_lshrrev_b32 v%d, 6, v0' % vt)
    k('v_and_b32 v%d, 63, v0' % vlane)
    k('v_readfirstlane_b32 s3, v%d' % vt)
    k('s_and_b32 s26, s2, 7')
    k('s_lshr_b32 s27, s2, 3')
    k('s_and_b32 s28, s27, 3')
    k('s_lshr_b32 s27, s27, 2')
    k('s_mul_i32 s29, s26, 36')
    k('s_mul_i32 s30, s28, 9')
    k('s_add_u32 s29, s29, s30')
    k('s_lshl_b32 s30, s27, 3')
    k('s_add_u32 s30, s30, s3')
    for n in range(1, 9):
        k('s_mov_b32 s%d, %d' % (40 + n, 4096 * n))
    ioff = [0, 512, 1536, 2560, 3584]
    k('s_and_b32 s31, s3, 3')
    k('s_mul_i32 s33, s31, %d' % (16 * 9216))
    for i in range(5):
        q0 = 0 if i == 0 else 32 + 64 * (i - 1)
        k('v_add_u32 v%d, %d, v%d' % (vt, q0, vlane) if q0 <= 64 else 'v_add_u32 v%d, 0x%x, v%d' % (vt, q0, vlane))
        k('v_mul_u32_u24 v%d, 0x%x, v%d' % (vD[i], 3641, vt))
        k('v_lshrrev_b32 v%d, 16, v%d' % (vD[i], vD[i]))
        k('v_mul_u32_u24 v%d, 18, v%d' % (vL16, vD[i]))
        k('v_sub_u32 v%d, v%d, v%d' % (vt, vt, vL16))
        k('v_mul_u32_u24 v%d, 0x%x, v%d' % (vD[i], 9216, vD[i]))
        k('v_lshl_add_u32 v%d, v%d, 4, v%d' % (vD[i], vt, vD[i]))
        k('v_add_u32 v%d, s33, v%d' % (vD[i], vD[i]))
        if ioff[i]:
            k('v_subrev_u32 v%d, 0x%x, v%d' % (vD[i], ioff[i], vD[i]))
    k('v_lshlrev_b32 v%d, 4, v%d' % (vL16, vlane))
    lanefn(k, vA[0], vlane, lambda l: ((l >> 4) & 1) * 18560 + (8 * (l >> 5) + ((l >> 2) & 3)) * 288 + (l & 3) * 8, 6, vt)
    k('v_add_u32 v%d, 0x%x, v%d' % (vA[1], 2 * SLOT, vA[0]))
    lanefn(k, vHH, vlane, lambda l: ((l >> 4) & 1) * 147456 + (l >> 5) * 256 + (l & 15) * 16, 6, vt)
    lanefn(k, vc1, vlane, lambda l: (l & 31) * 32, 6, vt)
    k('s_lshr_b32 s32, s3, 2')
    k('s_mul_i32 s34, s32, 18560')
    k('s_mul_i32 s35, s31, 4608')
    k('s_add_u32 s34, s34, s35')
    k('s_mov_b32 s35, 0')
    k('s_lshl_b32 s36, s29, 5')
    k('s_cmp_eq_u32 s32, 0')
    k('s_cselect_b32 s4, s4, s6')
    k('s_cselect_b32 s5, s5, s7')
    k('s_sub_u32 s37, %d, s36' % (576 * 9216))
    srd(k, 8, 4, off_s=36, nrec_s=37)
    k('s_mul_i32 s36, s30, 36864')
    srd(k, 12, 24, off_s=36, off_c=HC_OFF, nrec=36864)
    k('s_lshl_b32 s36, s30, 10')
    srd(k, 16, 24, off_s=36, off_c=SSQ_OFF, nrec=1024)
    k('s_mul_i32 s36, s30, %d' % (2 * 147456))
    k('s_lshl_b32 s37, s29, 9')
    k('s_add_u32 s36, s36, s37')
    srd(k, 20, 24, off_s=36, off_c=HH_OFF, nrec=147456 + 9 * 512)

    dma_last = {}

    def dma(c):
        k('s_add_u32 m0, s34, %d' % ((c % 4) * SLOT))
        k('s_mov_b32 exec_hi, 0')
        k('buffer_load_dwordx4 v%d, s[8:11], s35 offen lds' % vD[0])
        k('s_mov_b32 exec_hi, -1')
        for i in range(1, 5):
            dma_last[c] = k('buffer_load_dwordx4 v%d, s[8:11], s35 offen offset:%d lds' % (vD[i], ioff[i]))
        k('s_add_u32 s35, s35, %d' % (64 * 9216))

    def bload(s):
        so = '0' if s < 4 else 's%d' % (40 + s // 4)
        k('buffer_load_dwordx4 %s, v%d, s[12:15], %s offen offset:%d' % (ar(aB + 4 * (s % NB), 4), vL16, so, (s % 4) * 1024))

    dma(0)
    for s in range(0, 4):
        bload(s)
    dma(1)
    for s in range(4, 8):
        bload(s)
    k('buffer_load_dwordx4 %s, v%d, s[16:19], 0 offen' % (vr(vs, 4), vc1))
    k('buffer_load_dwordx4 %s, v%d, s[16:19], 0 offen offset:16' % (vr(vs + 4, 4), vc1))
    dma(2)
    for s in range(8, 12):
        bload(s)
    dma(3)
    for s in range(12, NB):
        bload(s)

    TAIL = 24
    order = [(s, t) for s in range(TAIL) for t in range(9)] + [(s, t) for t in range(9) for s in range(TAIL, 36)]
    N = len(order)
    D = 6
    sc = Sched(N)
    first = {}
    for n, (s, t) in enumerate(order):
        first.setdefault(s // 4, n)
    bpos = {c: max(0, first[c] - D // 2) for c in range(9)}
    bpos[7] = bpos[6]

    def barrier(c):
        def fn():
            k.wait_lg0()
            k.wait_vm(dma_last[c])
            k('s_barrier')
        return fn
    for c in range(9):
        if c == 6:
            continue
        sc.at(bpos[c], barrier(c))
    for c in range(5):
        sc.at(bpos[c + 1] + 4, (lambda cc: (lambda: dma(cc)))(c + 4))
    for n, (s, t) in enumerate(order):
        c = s // 4
        pos = max(n - D, bpos[c])
        off = (c % 2) * SLOT + (16 * (s % 4)) * 288 + 32 * t
        base = vA[(c % 4) // 2]
        r = aA + 4 * (n % RA)
        sc.at(pos, I(k, 'ds_read_b64_tr_b16 %s, v%d offset:%d' % (ar(r, 2), base, off)))
        sc.at(pos, I(k, 'ds_read_b64_tr_b16 %s, v%d offset:%d' % (ar(r + 2, 2), base, off + 4 * 288)))
    for s in range(36 - NB):
        sc.at(9 * (s + 1) + 1, (lambda ss: (lambda: bload(ss)))(s + NB))
    st = []
    for i in range(1, 8):
        st.append(I(k, 'v_add_f32 v%d, v%d, v%d' % (vs, vs, vs + i)))
    st.append(I(k, 'v_mov_b32 v%d, %s' % (vc2, f32(1e-5))))
    st.append(I(k, 'v_fmac_f32 v%d, %s, v%d' % (vc2, f32(1.0 / 576), vs)))
    st.append(I(k, 'v_rsq_f32 v%d, v%d' % (vc1, vc2)))
    st.append(I(k, 'v_mul_f32 v%d, %s, v%d' % (vc1, f32(-LOG2E), vc1)))
    sc.spread(100, 120, st)
    for t in range(9):
        g = acc + 16 * t
        u = g + 8
        e = []
        for h in range(2):
            rr = range(4 * h, 4 * h + 4)
            for i in rr:
                e.append(I(k, 'v_mul_f32 v%d, v%d, v%d' % (u + i, g + i, u + i)))
                e.append(I(k, 'v_mul_f32 v%d, v%d, v%d' % (g + i, g + i, vc1)))
            for i in rr:
                e.append(I(k, 'v_exp_f32 v%d, v%d' % (g + i, g + i)))
            for i in rr:
                e.append(I(k, 'v_fma_f32 v%d, v%d, v%d, v%d' % (g + i, g + i, vc2, vc2)))
            for i in rr:
                e.append(I(k, 'v_rcp_f32 v%d, v%d' % (g + i, g + i)))
            for i in rr:
                e.append(I(k, 'v_mul_f32 v%d, v%d, v%d' % (u + i, u + i, g + i)))
        for i in range(4):
            e.append(I(k, 'v_cvt_pk_bf16_f32 v%d, v%d, v%d' % (g + i, u + 2 * i, u + 2 * i + 1)))
        so = '0' if t < 8 else 's41'
        e.append(I(k, 'buffer_store_dwordx4 %s, v%d, s[20:23], %s offen offset:%d%s' % (vr(g, 4), vHH, so, (t % 8) * 512, st_flags)))
        p0 = 9 * TAIL + 12 * (t + 1)
        if t < 8:
            sc.spread(p0 + 2, p0 + 12, e)
        else:
            for fn in e:
                sc.at(N, fn)

    def slot(n):
        s, t = order[n]
        a = vr(acc + 16 * t, 16)
        k('v_mfma_f32_32x32x16_bf16 %s, %s, %s, %s' % (a, ar(aA + 4 * (n % RA), 4), ar(aB + 4 * (s % NB), 4), '0' if s == 0 else a))
    sc.run(slot)
    k.label('k3_end')
    k('s_endpgm')
    return k, '; @launch kernel=k3_kernel grid=(256,1,1) block=(512,1,1) lds=%d' % (4 * SLOT), 168


def k4(st_flags=''):
    k = Kern('k4_kernel')
    V = Alloc(1, 128)
    vt = V(); vlane = V(); vA = [V(), V(), V()]; vD = [V() for _ in range(4)]; vL16 = V(); vB1 = V()
    acc = 16
    RA = 8; aA = 0; NB = 12; aB = 32
    SLOT = 27648
    k('s_cmp_ge_u32 s2, 256')
    k('s_cbranch_scc1 k4_end')
    k('s_load_dwordx2 s[4:5], s[0:1], 56')
    k('s_load_dwordx2 s[24:25], s[0:1], 80')
    k('v_lshrrev_b32 v%d, 6, v0' % vt)
    k('v_and_b32 v%d, 63, v0' % vlane)
    k('v_readfirstlane_b32 s3, v%d' % vt)
    k('s_and_b32 s26, s2, 7')
    k('s_lshr_b32 s27, s2, 3')
    k('s_and_b32 s28, s27, 3')
    k('s_lshr_b32 s27, s27, 2')
    k('s_lshl_b32 s30, s27, 3')
    k('s_add_u32 s30, s30, s3')
    for n in range(1, 5):
        k('s_mov_b32 s%d, %d' % (40 + n, 4096 * n))
    ioff = [0, 384, 1408, 2432]
    k('s_mul_i32 s33, s3, %d' % (12 * 1152))
    for i in range(4):
        q0 = 0 if i == 0 else 24 + 64 * (i - 1)
        k('v_add_u32 v%d, %s, v%d' % (vt, lit(q0), vlane))
        k('v_mul_u32_u24 v%d, 0x%x, v%d' % (vD[i], 3641, vt))
        k('v_lshrrev_b32 v%d, 16, v%d' % (vD[i], vD[i]))
        k('v_mul_u32_u24 v%d, 18, v%d' % (vL16, vD[i]))
        k('v_sub_u32 v%d, v%d, v%d' % (vt, vt, vL16))
        k('v_mul_u32_u24 v%d, 0x%x, v%d' % (vD[i], 1152, vD[i]))
        k('v_lshl_add_u32 v%d, v%d, 4, v%d' % (vD[i], vt, vD[i]))
        k('v_add_u32 v%d, s33, v%d' % (vD[i], vD[i]))
        if ioff[i]:
            k('v_subrev_u32 v%d, 0x%x, v%d' % (vD[i], ioff[i], vD[i]))
    k('v_lshlrev_b32 v%d, 4, v%d' % (vL16, vlane))
    k('v_add_u32 v%d, 0x%x, v%d' % (vB1, 147456, vL16))
    lanefn(k, vA[0], vlane, lambda l: (16 * (l >> 5) + 4 * ((l >> 4) & 1) + ((l >> 2) & 3)) * 288 + (l & 3) * 8, 6, vt)
    k('v_add_u32 v%d, 0x%x, v%d' % (vA[1], 2 * SLOT, vA[0]))
    k('v_add_u32 v%d, 0x%x, v%d' % (vA[2], 4 * SLOT, vA[0]))
    k('s_mul_i32 s34, s3, %d' % (12 * 288))
    k('s_mov_b32 s35, 0')
    k('s_mul_i32 s36, s26, %d' % (576 * 1152))
    k('s_mul_i32 s37, s28, 288')
    k('s_add_u32 s36, s36, s37')
    k('s_sub_u32 s37, %d, s36' % (4608 * 1152))
    srd(k, 8, 4, off_s=36, nrec_s=37)
    k('s_mul_i32 s36, s30, %d' % (2 * 147456))
    k('s_mul_i32 s37, s26, %d' % (36 * 512))
    k('s_add_u32 s36, s36, s37')
    srd(k, 12, 24, off_s=36, off_c=HH_OFF, nrec=147456 + 36 * 512)
    k('s_mul_i32 s36, s26, %d' % (64 * 36864))
    k('s_mul_i32 s37, s30, 36864')
    k('s_add_u32 s36, s36, s37')
    k('s_mul_i32 s37, s28, %d' % (9 * 1024))
    k('s_add_u32 s36, s36, s37')
    srd(k, 20, 24, off_s=36, off_c=PART_OFF, nrec=9 * 1024)

    dma_last = {}

    def dma(c):
        k('s_add_u32 m0, s34, %d' % ((c % 5) * SLOT))
        k('s_mov_b64 exec, 0xffffff')
        k('buffer_load_dwordx4 v%d, s[8:11], s35 offen lds' % vD[0])
        k('s_mov_b64 exec, -1')
        for i in range(1, 4):
            dma_last[c] = k('buffer_load_dwordx4 v%d, s[8:11], s35 offen offset:%d lds' % (vD[i], ioff[i]))
        k('s_add_u32 s35, s35, %d' % (96 * 1152))

    def bload(s):
        so = '0' if s < 4 else 's%d' % (40 + s // 4)
        for tau in range(2):
            k('buffer_load_dwordx4 %s, v%d, s[12:15], %s offen offset:%d' % (
                ar(aB + 8 * (s % NB) + 4 * tau, 4), (vL16, vB1)[tau], so, (s % 4) * 1024))

    for c in range(5):
        dma(c)
        for s in range(3 * c, min(3 * c + 3, NB)):
            bload(s)

    TAIL = 15
    order = [(s, t) for s in range(TAIL) for t in range(9)] + [(s, t) for t in range(9) for s in range(TAIL, 18)]
    N = len(order)
    D = 6
    sc = Sched(N)
    first = {}
    for n, (s, t) in enumerate(order):
        first.setdefault(s // 3, n)
    bpos = {c: max(0, first[c] - D // 2) for c in range(6)}

    def barrier(c):
        def fn():
            k.wait_lg0()
            k.wait_vm(dma_last[c])
            k('s_barrier')
        return fn
    for c in range(6):
        sc.at(bpos[c], barrier(c))
    sc.at(bpos[1] + 4, lambda: dma(5))
    for n, (s, t) in enumerate(order):
        c = s // 3
        sl = c % 5
        pos = max(n - D, bpos[c])
        off = (sl % 2) * SLOT + (32 * (s % 3)) * 288 + 32 * t
        base = vA[sl // 2]
        r = aA + 4 * (n % RA)
        sc.at(pos, I(k, 'ds_read_b64_tr_b16 %s, v%d offset:%d' % (ar(r, 2), base, off)))
        sc.at(pos, I(k, 'ds_read_b64_tr_b16 %s, v%d offset:%d' % (ar(r + 2, 2), base, off + 8 * 288)))
    for s in range(18 - NB):
        sc.at(9 * (s + 1) + 1, (lambda ss: (lambda: bload(ss)))(s + NB))
    for t in range(9):
        a = acc + 8 * t
        e = []
        for i in range(4):
            e.append(I(k, 'v_cvt_pk_bf16_f32 v%d, v%d, v%d' % (a + i, a + 2 * i, a + 2 * i + 1)))
        so = '0' if t < 4 else 's%d' % (40 + t // 4)
        e.append(I(k, 'buffer_store_dwordx4 %s, v%d, s[20:23], %s offen offset:%d%s' % (vr(a, 4), vL16, so, (t % 4) * 1024, st_flags)))
        p0 = 9 * TAIL + 3 * (t + 1)
        for fn in e:
            sc.at(p0 + 2, fn)

    def slot(n):
        s, t = order[n]
        for tau in range(2):
            a = vr(acc + 8 * t + 4 * tau, 4)
            k('v_mfma_f32_16x16x32_bf16 %s, %s, %s, %s' % (a, ar(aA + 4 * (n % RA), 4), ar(aB + 8 * (s % NB) + 4 * tau, 4), '0' if s == 0 else a))
    sc.run(slot)
    k.label('k4_end')
    k('s_endpgm')
    return k, '; @launch kernel=k4_kernel grid=(256,1,1) block=(512,1,1) lds=%d' % (5 * SLOT), 128


def k5():
    k = Kern('k5_kernel')
    V = Alloc(1, 128)
    vt = V(); vlane = V(); vO = V(); vI = V()
    src = V(36, 4)
    ac = V(8, 4)
    t2 = V(2)
    k('s_cmp_ge_u32 s2, 256')
    k('s_cbranch_scc1 k5_end')
    k('s_load_dwordx2 s[4:5], s[0:1], 64')
    k('s_load_dwordx2 s[24:25], s[0:1], 80')
    k('s_lshr_b32 s26, s2, 2')
    k('s_and_b32 s27, s2, 3')
    k('v_lshlrev_b32 v%d, 4, v0' % vI)
    k('s_mul_i32 s36, s26, 36864')
    k('s_mul_i32 s37, s27, 9216')
    k('s_add_u32 s36, s36, s37')
    for x in range(1, 8):
        k('s_mov_b32 s%d, %d' % (40 + x, x * 64 * 36864))
    srd(k, 8, 24, off_s=36, off_c=PART_OFF, nrec=7 * 64 * 36864 + 9216)
    srd(k, 12, 24, off_s=36, off_c=H_OFF, nrec=9216)
    k('buffer_load_dwordx4 %s, v%d, s[12:15], 0 offen' % (vr(src, 4), vI))
    for x in range(8):
        k('buffer_load_dwordx4 %s, v%d, s[8:11], %s offen' % (vr(src + 4 + 4 * x, 4), vI, '0' if x == 0 else 's%d' % (40 + x)))
    k('s_mul_i32 s36, s26, %d' % (32 * 1152))
    k('s_mul_i32 s37, s27, 288')
    k('s_add_u32 s36, s36, s37')
    srd(k, 16, 4, off_s=36, nrec=31 * 1152 + 288)
    lanefn(k, vO, 0, lambda t: (16 * ((t >> 4) & 1) + (t & 15)) * 1152 + (t >> 6) * 32 + ((t >> 5) & 1) * 16, 10, vt)
    for j in range(9):
        for i in range(4):
            r = src + 4 * j + i
            if j == 0:
                k('v_lshlrev_b32 v%d, 16, v%d' % (ac + 2 * i, r))
                k('v_and_b32 v%d, 0xffff0000, v%d' % (ac + 2 * i + 1, r))
            else:
                k('v_lshlrev_b32 v%d, 16, v%d' % (t2, r))
                k('v_and_b32 v%d, 0xffff0000, v%d' % (t2 + 1, r))
                k('v_add_f32 v%d, v%d, v%d' % (ac + 2 * i, ac + 2 * i, t2))
                k('v_add_f32 v%d, v%d, v%d' % (ac + 2 * i + 1, ac + 2 * i + 1, t2 + 1))
    for i in range(4):
        k('v_cvt_pk_bf16_f32 v%d, v%d, v%d' % (src + i, ac + 2 * i, ac + 2 * i + 1))
    k('v_permlane16_swap_b32 v%d, v%d' % (src, src + 2))
    k('v_permlane16_swap_b32 v%d, v%d' % (src + 1, src + 3))
    k('buffer_store_dwordx4 %s, v%d, s[16:19], 0 offen' % (vr(src, 4), vO))
    k.label('k5_end')
    k('s_endpgm')
    return k, '; @launch kernel=k5_kernel grid=(256,1,1) block=(576,1,1) lds=0', None
```

```python
import sys, importlib
sys.path.insert(0, 'gen')
from common import *
import k345

NAME = 'sequential_preLN__linear_kernel_hedgehog__glu_gated_swiglu__prompt'


def build(kerns):
    hdr = []
    bodies = []
    descs = []
    for k, launch, ao in kerns:
        hdr.append(launch)
        b, d = kernel_text(k, ao)
        bodies.append(b)
        descs.append(d)
    return '\n'.join(hdr) + '\n.amdgcn_target "amdgcn-amd-amdhsa--gfx950"\n' + '\n'.join(bodies) + '\n'.join(descs)


if __name__ == '__main__':
    ks = []
    try:
        import k1
        ks += [k1.k1()]
    except ImportError:
        pass
    import k2
    ks += [k2.k2()]
    import k34, json
    ks += [k34.k34(json.loads(os.environ.get('P34', '{}'))), k345.k5()]
    out = sys.argv[1] if len(sys.argv) > 1 else 'cdna_kernels/%s.s' % NAME
    s = build(ks)
    open(out, 'w').write(s)
    for k, _, _ in ks:
        print(k.name, len(k.ins), k.maxregs())
    print(len(s), 'bytes')
```

```python
from asmlib import *

KV_OFF = 0
KVL_REL = 81920
KV_BYTES = 92160
MEANX_OFF = 0x20000
WBAR_OFF = 0x22000
SSQ_OFF = 0x24000
PHIQ_OFF = 0x40000
PHIL_OFF = 0x440000
H_OFF = 0x500000
HC_OFF = 0x740000
HH_OFF = 0x1000000
PART_OFF = 0x2200000
FLAG_OFF = 0x36000
BIG = 0x40000000
LOG2E = 1.4426950408889634


def f32(x):
    import struct
    return '0x%08x' % struct.unpack('<I', struct.pack('<f', x))[0]


def srd(k, sd, sptr, off_s=None, off_c=0, nrec=None, nrec_s=None):
    if off_s is None and off_c == 0:
        k('s_mov_b32 s%d, s%d' % (sd, sptr))
        k('s_mov_b32 s%d, s%d' % (sd + 1, sptr + 1))
    else:
        src = sptr
        if off_c:
            k('s_add_u32 s%d, s%d, %s' % (sd, src, lit(off_c)))
            k('s_addc_u32 s%d, s%d, 0' % (sd + 1, src + 1))
            src = sd
        if off_s is not None:
            k('s_add_u32 s%d, s%d, s%d' % (sd, src, off_s))
            k('s_addc_u32 s%d, s%d, 0' % (sd + 1, src + 1))
    if nrec_s is not None:
        k('s_mov_b32 s%d, s%d' % (sd + 2, nrec_s))
    else:
        k('s_mov_b32 s%d, %s' % (sd + 2, lit(nrec)))
    k('s_mov_b32 s%d, 0x00020000' % (sd + 3))


class Sched:
    def __init__(self, n):
        self.n = n
        self.pre = [[] for _ in range(n + 1)]

    def at(self, pos, fn):
        pos = max(0, min(self.n, pos))
        self.pre[pos].append(fn)

    def spread(self, p0, p1, fns):
        m = p1 - p0
        for i, fn in enumerate(fns):
            self.at(p0 + (i * m) // len(fns), fn)

    def run(self, slotfn):
        for i in range(self.n):
            for fn in self.pre[i]:
                fn()
            slotfn(i)
        for fn in self.pre[self.n]:
            fn()


def I(k, text):
    return lambda: k(text)


import os
PROF = bool(os.environ.get('PROF'))
TS_OFF = 0x3400000


def stamp(k, i):
    if PROF:
        k('%s s[%d:%d]' % ('s_memtime' if os.environ['PROF'] == '2' else 's_memrealtime', 90 + 2 * i, 91 + 2 * i))
        k.nstamp = max(getattr(k, 'nstamp', 0), i + 1)


def stamp_end(k, kid, sws, swave=3):
    if not PROF:
        return
    k.wait_all()
    stamp(k, 5)
    k.wait_all()
    for i in range(6):
        k('v_mov_b32 v%d, s%d' % (2 + i, 90 + 2 * i))
    k('s_lshl_b32 s90, s2, 4')
    if swave is None:
        k('v_lshrrev_b32 v1, 6, v0')
        k('v_readfirstlane_b32 s91, v1')
        k('s_add_u32 s90, s90, s91')
    else:
        k('s_add_u32 s90, s90, s%d' % swave)
    k('s_lshl_b32 s90, s90, 5')
    k('s_add_u32 s90, s90, 0x%x' % (TS_OFF + kid * 256 * 16 * 32))
    k('v_mov_b32 v1, s90')
    k('s_mov_b64 exec, 1')
    k('global_store_dwordx4 v1, v[2:5], s[%d:%d]' % (sws, sws + 1))
    k('global_store_dwordx2 v1, v[6:7], s[%d:%d] offset:16' % (sws, sws + 1))
```

```python
from common import *


def wave_sel(k, sd, vals, sw=3):
    k('s_mov_b32 s%d, %s' % (sd, lit(vals[3])))
    for w in range(3):
        if vals[w] != vals[3]:
            k('s_cmp_eq_u32 s%d, %d' % (sw, w))
            k('s_cselect_b32 s%d, %s, s%d' % (sd, lit(vals[w]), sd))


def wave_mask(k, sd, preds):
    ms = [mask64(p) for p in preds]
    wave_sel(k, sd, [m & 0xffffffff for m in ms])
    wave_sel(k, sd + 1, [m >> 32 for m in ms])


def k1():
    k = Kern('k1_kernel')
    V = Alloc(1, 256)
    vt = V(); vt2 = V(); vlane = V(); vBIG = V()
    vDW = [V() for _ in range(4)]; vDX = [V() for _ in range(4)]
    vXB = [V(), V()]; vWA = V(); vWL = V()
    vKA = V(); vKB = V(); vKL = V()
    vPm = V(); vPl = V(); vPv = V(); vPg = V()
    vAt = [V() for _ in range(4)]; vAl = [V() for _ in range(4)]
    vQ = V(); vQL = V(); vMXo = V(); vTk = V(); vFl = V(); vZo = V(); vZ2 = V(); vWBo = V()
    vPF = [V() for _ in range(6)]
    ones = V(4, 2)
    wrow = V(8, 2)
    wacc = V(4, 2)
    zer = wacc
    Am = V(12, 2); Alq = V(6, 2); Alk = V(6, 2)
    acc = V(56, 2)
    aS = V(8, 2); aG = V(8, 2); cs = V(28, 2)
    vmean = V(2); vrstd = V(2); vc = V(2); vsL = V(2)
    Bq = V(8, 2); Bk = V(8, 2); BL = V(4, 2); Bv = wrow
    Pk = V(24, 2)
    Pq = cs
    tm = V(14, 2)
    kvacc = acc
    RA = 10; aA = 0; aB = 40; NBK = 3
    aKA = 64; aKB = 80
    WSL = 15360; XB = 61440; PV = 126976; WP = 155648; ZA = WP + 1296
    g = lambda l: (l >> 4) & 3
    m = lambda l: l & 15
    r_ = lambda l: (l >> 2) & 3
    cc = lambda l: l & 3
    wv = lambda t: t >> 6

    k('s_cmp_ge_u32 s2, 256')
    k('s_cbranch_scc1 k1_end')
    stamp(k, 0)
    k('s_load_dwordx8 s[4:11], s[0:1], 0')
    k('s_load_dwordx4 s[12:15], s[0:1], 72')
    k('s_load_dwordx4 s[76:79], s[0:1], 40')
    k('s_load_dwordx2 s[80:81], s[0:1], 56')
    k('v_lshrrev_b32 v%d, 6, v0' % vt)
    k('v_and_b32 v%d, 63, v0' % vlane)
    k('v_readfirstlane_b32 s3, v%d' % vt)
    k('v_mov_b32 v%d, 0x%x' % (vBIG, BIG))
    k('s_and_b32 s16, s2, 7')
    k('s_lshr_b32 s17, s2, 3')
    k('s_and_b32 s18, s17, 15')
    k('s_lshr_b32 s17, s17, 4')
    k('s_lshl_b32 s17, s17, 3')
    k('s_add_u32 s17, s17, s16')
    k('s_lshl_b32 s19, s18, 4')
    k('v_mov_b32 v%d, s19' % vt)
    k('v_cmp_eq_u32 vcc, 0, v0')
    k('v_cndmask_b32 v%d, v%d, v%d, vcc' % (vZo, vBIG, vt))
    k('v_mov_b32 v%d, 1' % vTk)
    srd(k, 20, 12, nrec=256)
    wio = [0, 768, 1792, 2816]
    k('s_mul_i32 s19, s3, %d' % (16 * 3456))
    for i in range(4):
        q0 = 0 if i == 0 else 48 + 64 * (i - 1)
        d = vDW[i]
        k('v_add_u32 v%d, %s, v%d' % (vt, lit(q0), vlane))
        k('v_mul_u32_u24 v%d, 0x%x, v%d' % (d, 4370, vt))
        k('v_lshrrev_b32 v%d, 16, v%d' % (d, d))
        k('v_mul_u32_u24 v%d, 15, v%d' % (vt2, d))
        k('v_sub_u32 v%d, v%d, v%d' % (vt, vt, vt2))
        k('v_mul_u32_u24 v%d, 0x%x, v%d' % (d, 3456, d))
        k('v_lshl_add_u32 v%d, v%d, 4, v%d' % (d, vt, d))
        k('v_mul_u32_u24 v%d, 0x%x, v%d' % (vt, 13108, vt))
        k('v_lshrrev_b32 v%d, 16, v%d' % (vt, vt))
        k('v_mul_u32_u24 v%d, 0x%x, v%d' % (vt, 1152 - 80, vt))
        k('v_add3_u32 v%d, v%d, v%d, s19' % (d, d, vt))
        if wio[i]:
            k('v_subrev_u32 v%d, 0x%x, v%d' % (d, wio[i], d))
    k('s_mul_i32 s19, s18, 72')
    k('s_sub_u32 s40, %d, s19' % (576 * 3456))
    srd(k, 24, 6, off_s=19, nrec_s=40)
    k('v_lshrrev_b32 v%d, 4, v%d' % (vt, vlane))
    k('v_and_b32 v%d, 7, v%d' % (vt2, vlane))
    k('v_xor_b32 v%d, v%d, v%d' % (vt, vt, vt2))
    k('v_lshrrev_b32 v%d, 3, v%d' % (vt2, vlane))
    k('v_mul_u32_u24 v%d, 0x480, v%d' % (vt2, vt2))
    k('v_lshl_add_u32 v%d, v%d, 4, v%d' % (vDX[0], vt, vt2))
    k('v_xor_b32 v%d, 4, v%d' % (vt, vt))
    k('v_lshl_add_u32 v%d, v%d, 4, v%d' % (vDX[1], vt, vt2))
    k('v_add_u32 v%d, 0x%x, v%d' % (vDX[1], 9216 - 1024, vDX[1]))
    k('v_add_u32 v%d, 0x%x, v%d' % (vDX[2], 2 * (9216 - 1024), vDX[0]))
    k('v_add_u32 v%d, 0x%x, v%d' % (vDX[3], 2 * (9216 - 1024), vDX[1]))
    k('s_lshl_b32 s41, s17, 2')
    k('s_add_u32 s41, s41, s3')
    k('s_mul_i32 s19, s41, %d' % (32 * 1152))
    srd(k, 28, 4, off_s=19, nrec=32 * 1152)
    k('s_mul_i32 s42, s3, %d' % (16 * 240))
    k('s_lshl_b32 s43, s3, 12')
    k('s_add_u32 s43, s43, %d' % XB)
    k('s_mov_b32 s44, 0')
    k('s_mov_b32 s45, 0')
    dma_last = {}

    def dma(c):
        k('s_add_u32 m0, s42, %d' % ((c % 4) * WSL))
        k('s_mov_b32 exec_hi, 0xffff')
        k('buffer_load_dwordx4 v%d, s[24:27], s44 offen lds' % vDW[0])
        k('s_mov_b32 exec_hi, -1')
        for i in range(1, 4):
            k('buffer_load_dwordx4 v%d, s[24:27], s44 offen offset:%d lds' % (vDW[i], wio[i]))
        k('s_add_u32 m0, s43, %d' % ((c % 4) * 16384))
        k('s_add_u32 s44, s44, %d' % (64 * 3456))
        for i in range(4):
            dma_last[c] = k('buffer_load_dwordx4 v%d, s[28:31], s45 offen offset:%d lds' % (vDX[i], 1024 * i))
        k('s_add_u32 s45, s45, 128')
    dma(0)
    k('s_mul_i32 s19, s18, 1296')
    srd(k, 32, 8, off_s=19, nrec=1296)
    k('v_lshlrev_b32 v%d, 4, v%d' % (vQ, vlane))
    k('s_mov_b32 m0, %d' % WP)
    k('buffer_load_dwordx4 v%d, s[32:35], 0 offen lds' % vQ)
    wp_id = k('buffer_load_dwordx4 v%d, s[32:35], 0 offen offset:1024 lds' % vQ)
    dma(1)
    k('s_lshl_b32 s46, s2, 2')
    k('s_add_u32 s46, s46, s3')
    k('s_mul_i32 s19, s46, 1152')
    srd(k, 36, 10, nrec=576 * 1152)
    k('buffer_load_dwordx4 %s, v%d, s[36:39], s19 offen' % (vr(wrow, 4), vQ))
    k('v_lshlrev_b32 v%d, 2, v%d' % (vt, vlane))
    smask(k, 48, lambda l: l < 32)
    k('v_cndmask_b32 v%d, v%d, v%d, s[48:49]' % (vt, vBIG, vt))
    k('buffer_load_dword v%d, v%d, s[36:39], s19 offen offset:1024' % (wrow + 4, vt))
    dma(2)
    dma(3)
    k('buffer_atomic_add v%d, v%d, s[20:23], 0 offen sc0 sc1' % (vTk, vZo))
    for i in range(4):
        k('v_mov_b32 v%d, 0x3f803f80' % (ones + i))
        k('v_mov_b32 v%d, 0' % (zer + i))
    for i in range(5, 8):
        k('v_mov_b32 v%d, 0' % (wrow + i))
    srd(k, 52, 14, off_c=KV_OFF, nrec=KV_BYTES)
    k('s_lshl_b32 s19, s18, 4')
    k('s_add_u32 s19, s19, 8')
    k('v_mov_b32 v%d, s19' % vFl)
    k('v_lshlrev_b32 v%d, 4, v%d' % (vZ2, vlane))

    def zeroing():
        k('v_readfirstlane_b32 s47, v%d' % vTk)
        k('s_or_b32 s47, s47, s3')
        k('s_cmp_eq_u32 s47, 0')
        k('s_cselect_b32 s47, 0, 0x%x' % BIG)
        k('v_add_u32 v%d, s47, v%d' % (vZo, vZ2))
        smask(k, 48, lambda l: l < 40)
        k('v_cndmask_b32 v%d, v%d, v%d, s[48:49]' % (vZ2, vBIG, vZo))
        k('s_mul_i32 s19, s18, 5120')
        for i in range(4):
            k('buffer_store_dwordx4 %s, v%d, s[52:55], s19 offen offset:%d sc0 sc1' % (vr(zer, 4), vZo, 1024 * i))
        k('s_add_u32 s19, s19, 4096')
        k('buffer_store_dwordx4 %s, v%d, s[52:55], s19 offen sc0 sc1' % (vr(zer, 4), vZo))
        k('s_mul_i32 s19, s18, 640')
        k('s_add_u32 s19, s19, %d' % KVL_REL)
        k('buffer_store_dwordx4 %s, v%d, s[52:55], s19 offen sc0 sc1' % (vr(zer, 4), vZ2))
        smask(k, 48, lambda l: l == 0)
        k('v_add_u32 v%d, s47, v%d' % (vt, vFl))
        k('v_cndmask_b32 v%d, v%d, v%d, s[48:49]' % (vZ2, vBIG, vt))
        k('v_mov_b32 v%d, 1' % vTk)
    k('s_lshr_b32 s19, s2, 3')
    k('s_mul_i32 s19, s19, 162')
    k('v_add_u32 v%d, s19, v0' % vt)
    k('v_lshlrev_b32 v%d, 7, v%d' % (vPF[0], vt))
    k('v_mul_u32_u24 v%d, 0x%x, v%d' % (vt2, 7282, vt))
    k('v_lshrrev_b32 v%d, 16, v%d' % (vt2, vt2))
    k('v_mul_u32_u24 v%d, 0x%x, v%d' % (vt2, 9216 - 1152, vt2))
    k('v_add_u32 v%d, v%d, v%d' % (vPF[1], vPF[0], vt2))
    k('s_mul_i32 s66, s16, 1152')
    k('s_mul_i32 s67, s16, %d' % (576 * 1152))

    def prefetch():
        k('buffer_load_dword v%d, v%d, s[36:39], 0 offen' % (vPF[2], vPF[0]))
        srd(k, 32, 76, nrec=576 * 9216)
        k('buffer_load_dword v%d, v%d, s[32:35], s66 offen' % (vPF[3], vPF[1]))
        srd(k, 4, 78, nrec=576 * 9216)
        k('buffer_load_dword v%d, v%d, s[4:7], s66 offen' % (vPF[4], vPF[1]))
        srd(k, 8, 80, nrec=4608 * 1152)
        k('buffer_load_dword v%d, v%d, s[8:11], s67 offen' % (vPF[5], vPF[0]))
    k('v_lshrrev_b32 v%d, 4, v%d' % (vt, vlane))
    k('v_bfe_u32 v%d, v%d, 1, 3' % (vt2, vlane))
    k('v_xor_b32 v%d, v%d, v%d' % (vt, vt, vt2))
    k('v_and_b32 v%d, 15, v%d' % (vt2, vlane))
    k('v_lshlrev_b32 v%d, 7, v%d' % (vt2, vt2))
    k('v_add_u32 v%d, s43, v%d' % (vt2, vt2))
    k('v_lshl_add_u32 v%d, v%d, 4, v%d' % (vXB[0], vt, vt2))
    k('v_xor_b32 v%d, 4, v%d' % (vt, vt))
    k('v_lshl_add_u32 v%d, v%d, 4, v%d' % (vXB[1], vt, vt2))
    lanefn(k, vWA, vlane, lambda l: (8 * g(l) + r_(l)) * 240 + (0, 8, 40, 48)[cc(l)], 6, vt)
    lanefn(k, vWL, vlane, lambda l: (8 * g(l) + r_(l)) * 240 + (32, 112, 192, 72)[cc(l)], 6, vt)
    lanefn(k, vKA, 0, lambda t: PV + (4 * g(t) + r_(t)) * 224 + ((144 + 32 * wv(t) + (0, 16, 8, 24)[cc(t)]) if wv(t) < 2 else (208, 216, 216, 216)[cc(t)]), 8, vt)
    lanefn(k, vKB, 0, lambda t: PV + (4 * g(t) + r_(t)) * 224 + 64 * (wv(t) & 1) + 8 * cc(t), 8, vt)
    lanefn(k, vKL, vlane, lambda l: PV + (4 * g(l) + r_(l)) * 224 + 128 + 8 * (cc(l) & 1), 6, vt)
    lanefn(k, vPm, 0, lambda t: PV + (32 * wv(t) + m(t)) * 224 + 32 * g(t), 8, vt)
    lanefn(k, vPl, 0, lambda t: PV + (32 * wv(t) + m(t)) * 224 + 128 + 4 * g(t), 8, vt)
    lanefn(k, vPv, 0, lambda t: PV + (32 * wv(t) + m(t)) * 224 + 144 + 16 * g(t), 8, vt)
    lanefn(k, vPg, 0, lambda t: PV + (32 * wv(t) + m(t)) * 224 + 192 + 8 * g(t), 8, vt)
    lanefn(k, tm, 0, lambda t: (g(t) * 256 if wv(t) < 2 else (1024 if g(t) == 0 else 1152)), 8, vt)
    k('s_and_b32 s19, s3, 1')
    k('s_lshl_b32 s40, s18, 1')
    k('s_add_u32 s19, s19, s40')
    k('s_mul_i32 s19, s19, 2560')
    lanefn(k, tm + 1, vlane, lambda l: m(l) * 4, 6, vt)
    k('v_add3_u32 v%d, v%d, v%d, s19' % (tm + 1, tm + 1, tm))
    k('s_mul_i32 s19, s18, 640')
    k('s_add_u32 s19, s19, %d' % KVL_REL)
    lanefn(k, tm + 2, vlane, lambda l: ((m(l) >> 2) & 1) * 320 + (l & 3) * 4, 6, vt)
    k('v_lshrrev_b32 v%d, 2, v%d' % (tm, tm))
    k('v_add3_u32 v%d, v%d, v%d, s19' % (tm + 2, tm + 2, tm))
    for i in range(4):
        wave_sel(k, 19, [64 * i, 64 * i, 64 * (i & 1), 64 * (i & 1)])
        allm = lambda l: True
        wave_mask(k, 48, [allm, allm] + [(lambda l, e=e: (g(l) == 0 and (i >> 1) == e) or (g(l) == 1 and i == 0)) for e in range(2)])
        k('v_add_u32 v%d, s19, v%d' % (vt, tm + 1))
        k('v_cndmask_b32 v%d, v%d, v%d, s[48:49]' % (vAt[i], vBIG, vt))
        k('s_lshr_b32 s19, s19, 2')
        wave_mask(k, 48, [lambda l: m(l) >> 2 == 0, lambda l: m(l) >> 2 == 1,
                          lambda l: m(l) < 8 and ((g(l) == 0 and (i >> 1) == (m(l) >> 2)) or (g(l) == 1 and i == 0)),
                          lambda l: False])
        k('v_add_u32 v%d, s19, v%d' % (vt, tm + 2))
        k('v_cndmask_b32 v%d, v%d, v%d, s[48:49]' % (vAl[i], vBIG, vt))
    lanefn(k, vQ, vlane, lambda l: g(l) * 512 + m(l) * 16, 6, vt)
    lanefn(k, vQL, vlane, lambda l: g(l) * 4 + m(l) * 16, 6, vt)
    k('s_lshl_b32 s19, s41, 16')
    k('s_lshl_b32 s40, s18, 11')
    k('s_add_u32 s19, s19, s40')
    srd(k, 56, 14, off_s=19, off_c=PHIQ_OFF, nrec=32768 + 2048)
    k('s_lshl_b32 s19, s41, 13')
    k('s_lshl_b32 s40, s18, 8')
    k('s_add_u32 s19, s19, s40')
    srd(k, 60, 14, off_s=19, off_c=PHIL_OFF, nrec=4096 + 256)
    k('s_mov_b32 s64, 32768')
    k('s_mov_b32 s65, 4096')
    k('s_lshl_b32 s19, s41, 7')
    srd(k, 68, 14, off_s=19, off_c=MEANX_OFF, nrec=128)
    k('s_cmp_eq_u32 s18, 0')
    k('s_cselect_b32 s19, 0, 0x%x' % BIG)
    k('v_lshlrev_b32 v%d, 2, v%d' % (vt, vlane))
    k('v_add_u32 v%d, s19, v%d' % (vt, vt))
    smask(k, 48, lambda l: l < 16)
    k('v_cndmask_b32 v%d, v%d, v%d, s[48:49]' % (vMXo, vBIG, vt))
    srd(k, 72, 14, off_c=WBAR_OFF, nrec=4608)
    k('s_lshl_b32 s19, s46, 3')
    k('v_mov_b32 v%d, s19' % vt)
    smask(k, 48, lambda l: l == 0)
    k('v_cndmask_b32 v%d, v%d, v%d, s[48:49]' % (vWBo, vBIG, vt))
    go = lambda l: m(l) >> 2
    lanefn(k, tm, vlane, lambda l: WP + (go(l) >> 1) * 648 + (0, 4, 2, 6)[g(l)] * 36 + (9 * (go(l) & 1) + (l & 3)) * 2, 6, vt)
    lanefn(k, tm + 1, vlane, lambda l: WP + (9 * (go(l) & 1) + (l & 3)) * 2, 6, vt)
    k('v_mov_b32 v%d, 0x%x' % (vt2, ZA))
    sel = [(tm + 2, tm, lambda l: g(l) >> 1 == go(l) >> 1), (tm + 3, tm, lambda l: g(l) >> 1 == go(l) >> 1 and l & 3 == 0),
           (tm + 4, tm + 1, lambda l: go(l) >> 1 == 0), (tm + 5, tm + 1, lambda l: go(l) >> 1 == 0 and l & 3 == 0),
           (tm + 6, tm + 1, lambda l: go(l) >> 1 == 1), (tm + 7, tm + 1, lambda l: go(l) >> 1 == 1 and l & 3 == 0)]
    for d, s, p in sel:
        smask(k, 48, p)
        k('v_cndmask_b32 v%d, v%d, v%d, s[48:49]' % (d, vt2, s))
    k.wait_vm(wp_id)
    comb = []
    nt = [acc]

    def gath(dst, addr, o0, o1):
        k('ds_read_u16 v%d, v%d offset:%d' % (dst, addr, o0))
        k('ds_read_u16 v%d, v%d offset:%d' % (nt[0], addr, o1))
        comb.append((dst, nt[0]))
        nt[0] += 1
    for u in range(3):
        for j in range(0, 8, 2):
            o = 36 * ((j % 4) + 8 * (j // 4)) + 8 * u
            gath(Am + 4 * u + j // 2, tm + 2 + (u == 2), o, o + 36)
        gath(Alq + 2 * u, tm + 4 + (u == 2), 36 * 16 + 8 * u, 36 * 17 + 8 * u)
        gath(Alq + 2 * u + 1, tm + 6 + (u == 2), 648 + 8 * u, 648 + 36 + 8 * u)
    for d, t in comb:
        k('v_lshl_or_b32 v%d, v%d, 16, v%d' % (d, t, d))
    smask(k, 48, lambda l: g(l) == 0)
    smask(k, 50, lambda l: g(l) == 1)
    for i in range(6):
        k('v_cndmask_b32 v%d, 0, v%d, s[50:51]' % (Alk + i, Alq + i))
        k('v_cndmask_b32 v%d, 0, v%d, s[48:49]' % (Alq + i, Alq + i))

    slots = [(s, t) for s in range(18) for t in range(8)]
    N = len(slots)
    sc = Sched(N)
    D = 5
    bpos = {c: max(0, 16 * c - 3) for c in range(9)}

    def barrier(c):
        def fn():
            k.wait_lg0()
            k.wait_vm(dma_last[c])
            k('s_barrier')
            if c == 0:
                stamp(k, 1)
            if c == 4:
                stamp(k, 2)
            if c == 4:
                zeroing()
            if c == 7:
                k('buffer_store_dword v%d, v%d, s[20:23], 0 offen sc0 sc1' % (vTk, vZ2))
        return fn
    for c in range(9):
        sc.at(bpos[c], barrier(c))
    for c in range(5):
        sc.at(bpos[c + 1] + 3, (lambda cc_: (lambda: dma(cc_)))(c + 4))
    sc.at(bpos[5] + 6, prefetch)
    na = 0
    aidx = {}
    for n, (s, t) in enumerate(slots):
        c, ks = s // 2, s % 2
        if t == 0:
            p = max(n - D, bpos[c])
            for tau in range(2):
                sc.at(p, I(k, 'ds_read_b128 %s, v%d offset:%d' % (ar(aB + 8 * (s % NBK) + 4 * tau, 4), vXB[ks], (c % 4) * 16384 + 2048 * tau)))
        if t < 7:
            p = max(n - D, bpos[c])
            r = aA + 4 * (na % RA)
            aidx[n] = r
            na += 1
            off = (c % 4) * WSL + 32 * ks * 240 + ((t // 2) * 80 + 16 * (t % 2) if t < 6 else 0)
            base = vWA if t < 6 else vWL
            sc.at(p, I(k, 'ds_read_b64_tr_b16 %s, v%d offset:%d' % (ar(r, 2), base, off)))
            sc.at(p, I(k, 'ds_read_b64_tr_b16 %s, v%d offset:%d' % (ar(r + 2, 2), base, off + 4 * 240)))
    wb = [I(k, 'v_mfma_f32_16x16x32_bf16 %s, %s, %s, 0' % (vr(wacc, 4), vr(ones, 4), vr(wrow, 4))),
          I(k, 'v_mfma_f32_16x16x32_bf16 %s, %s, %s, %s' % (vr(wacc, 4), vr(ones, 4), vr(wrow + 4, 4), vr(wacc, 4)))]
    sc.at(90, wb[0]); sc.at(90, wb[1])
    wb = []
    for sh in (8, 4, 2, 1):
        wb.append(I(k, 'v_add_f32_dpp v%d, v%d, v%d row_ror:%d row_mask:0xf bank_mask:0xf' % (wacc, wacc, wacc, sh)))
    wb.append(I(k, 'v_mul_f32 v%d, %s, v%d' % (wacc, f32(1.0 / 576), wacc)))
    wb.append(I(k, 'v_cvt_pk_bf16_f32 v%d, v%d, v%d' % (wacc + 1, wacc, wacc)))
    wb.append(I(k, 'v_and_b32 v%d, 0xffff0000, v%d' % (wacc + 1, wacc + 1)))
    wb.append(I(k, 'v_sub_f32 v%d, v%d, v%d' % (wacc + 2, wacc, wacc + 1)))
    wb.append(I(k, 'v_cvt_pk_bf16_f32 v%d, v%d, v%d' % (wacc, wacc + 1, wacc + 2)))
    wb.append(I(k, 'v_mov_b32 v%d, 0' % (wacc + 1)))
    wb.append(I(k, 'buffer_store_dwordx2 %s, v%d, s[72:75], 0 offen' % (vr(wacc, 2), vWBo)))
    sc.spread(94, 106, wb)

    def slot(n):
        s, t = slots[n]
        B = [ar(aB + 8 * (s % NBK) + 4 * tau, 4) for tau in range(2)]
        if t < 7:
            A = ar(aidx[n], 4)
            for tau in range(2):
                a = vr(acc + 8 * t + 4 * tau, 4)
                k('v_mfma_f32_16x16x32_bf16 %s, %s, %s, %s' % (a, A, B[tau], a if s else '0'))
            a = vr(cs + 4 * t, 4)
            k('v_mfma_f32_16x16x32_bf16 %s, %s, %s, %s' % (a, A, vr(ones, 4), a if s else '0'))
        else:
            for tau in range(2):
                a = vr(aS + 4 * tau, 4)
                k('v_mfma_f32_16x16x32_bf16 %s, %s, %s, %s' % (a, vr(ones, 4), B[tau], a if s else '0'))
                a = vr(aG + 4 * tau, 4)
                k('v_mfma_f32_16x16x32_bf16 %s, %s, %s, %s' % (a, B[tau], B[tau], a if s else '0'))
    sc.run(slot)

    stamp(k, 3)
    for i in range(1, 4):
        smask(k, 76 + 2 * i, lambda l: l & 3 == i)
    smask(k, 76, lambda l: g(l) == m(l) >> 2)
    smask(k, 84, lambda l: g(l) == 2)
    smask(k, 86, lambda l: g(l) == 3)
    for tau in range(2):
        G = aG + 4 * tau
        for i in range(1, 4):
            k('v_cndmask_b32 v%d, v%d, v%d, s[%d:%d]' % (G, G, G + i, 76 + 2 * i, 77 + 2 * i))
        k('v_cndmask_b32 v%d, 0, v%d, s[76:77]' % (G, G))
        k('v_mul_f32 v%d, %s, v%d' % (vmean + tau, f32(-1.0 / 576), aS + 4 * tau))
        k('v_mov_b32 v%d, v%d' % (G + 1, G))
    for tau in range(2):
        G = aG + 4 * tau
        k('v_permlane16_swap_b32 v%d, v%d' % (G + 1, G))
        k('v_add_f32 v%d, v%d, v%d' % (G, G, G + 1))
        k('v_mov_b32 v%d, v%d' % (G + 1, G))
    for tau in range(2):
        G = aG + 4 * tau
        k('v_permlane32_swap_b32 v%d, v%d' % (G + 1, G))
        k('v_add_f32 v%d, v%d, v%d' % (G, G, G + 1))
        k('v_mul_f32 v%d, v%d, v%d' % (G + 1, vmean + tau, vmean + tau))
        k('v_mul_f32 v%d, %s, v%d' % (G, f32(1.0 / 576), G))
        k('v_sub_f32 v%d, v%d, v%d' % (G, G, G + 1))
        k('v_add_f32 v%d, %s, v%d' % (G, f32(1e-5), G))
        k('v_rsq_f32 v%d, v%d' % (vrstd + tau, G))
        k('v_sub_f32 v%d, 0, v%d' % (G + 2, vmean + tau))
        k('v_mul_f32 v%d, %s, v%d' % (vc + tau, f32(LOG2E), vrstd + tau))
        k('v_cndmask_b32 v%d, 1.0, v%d, s[84:85]' % (vsL + tau, vrstd + tau))
        k('buffer_store_dword v%d, v%d, s[68:71], 0 offen offset:%d' % (G + 2, vMXo, 64 * tau))

    def fix(t, tau, dst, scale=None):
        a = acc + 8 * t + 4 * tau
        for i in range(4):
            k('v_fmac_f32 v%d, v%d, v%d' % (a + i, cs + 4 * t + i, vmean + tau))
        if scale is not None:
            for i in range(4):
                k('v_mul_f32 v%d, v%d, v%d' % (a + i, a + i, scale))
        k('v_cvt_pk_bf16_f32 v%d, v%d, v%d' % (dst, a, a + 1))
        k('v_cvt_pk_bf16_f32 v%d, v%d, v%d' % (dst + 1, a + 2, a + 3))

    def phimm(P, B, Al, tau):
        for u in range(3):
            p = vr(P + 12 * tau + 4 * u, 4)
            k('v_mfma_f32_16x16x32_bf16 %s, %s, %s, 0' % (p, vr(Am + 4 * u, 4), vr(B + 4 * tau, 4)))
        for u in range(3):
            p = vr(P + 12 * tau + 4 * u, 4)
            k('v_mfma_f32_16x16x16_bf16 %s, %s, %s, %s' % (p, vr(Al + 2 * u, 2), vr(BL + 2 * tau, 2), p))

    for tau in range(2):
        fix(6, tau, BL + 2 * tau, vsL + tau)
        fix(2, tau, Bk + 4 * tau)
        fix(3, tau, Bk + 4 * tau + 2)
        phimm(Pk, Bk, Alk, tau)
    for tau in range(2):
        fix(4, tau, Bv + 4 * tau, vrstd + tau)
        fix(5, tau, Bv + 4 * tau + 2, vrstd + tau)
        k('ds_write_b128 v%d, %s offset:%d' % (vPv, vr(Bv + 4 * tau, 4), 3584 * tau))
        k('v_mov_b32 v%d, 0x3f80' % vt)
        k('v_cndmask_b32 v%d, v%d, v%d, s[86:87]' % (tm, BL + 2 * tau, vt))
        k('v_cndmask_b32 v%d, v%d, 0, s[86:87]' % (tm + 1, BL + 2 * tau + 1))
        k('s_mov_b32 exec_lo, 0')
        k('ds_write_b64 v%d, %s offset:%d' % (vPg, vr(tm, 2), 3584 * tau))
        k('s_mov_b32 exec_lo, -1')
    k('buffer_load_dword v%d, v%d, s[20:23], 0 offen sc0 sc1' % (vZo, vFl))
    for tau in range(2):
        fix(0, tau, Bq + 4 * tau)
        fix(1, tau, Bq + 4 * tau + 2)
    for tau in range(2):
        phimm(Pq, Bq, Alq, tau)

    def softmax(P, tau):
        p = [P + 12 * tau + i for i in range(9)]
        en = [tm + i for i in range(9)]
        mx, mn, t1, t2 = tm + 9, tm + 10, tm + 11, tm + 12
        c = vc + tau
        L = []
        A = lambda s: L.append(I(k, s))
        A('v_max3_f32 v%d, v%d, v%d, v%d' % (mx, p[0], p[1], p[2]))
        A('v_min3_f32 v%d, v%d, v%d, v%d' % (mn, p[0], p[1], p[2]))
        for i in (3, 5, 7):
            A('v_max3_f32 v%d, v%d, v%d, v%d' % (mx, mx, p[i], p[i + 1]))
            A('v_min3_f32 v%d, v%d, v%d, v%d' % (mn, mn, p[i], p[i + 1]))
        A('v_mov_b32 v%d, v%d' % (t1, mx))
        A('v_mov_b32 v%d, v%d' % (t2, mn))
        A('v_permlane16_swap_b32 v%d, v%d' % (t1, mx))
        A('v_permlane16_swap_b32 v%d, v%d' % (t2, mn))
        A('v_max_f32 v%d, v%d, v%d' % (mx, mx, t1))
        A('v_min_f32 v%d, v%d, v%d' % (mn, mn, t2))
        A('v_mul_f32 v%d, v%d, v%d' % (mx, mx, c))
        A('v_mul_f32 v%d, v%d, v%d' % (mn, mn, c))
        for i in range(9):
            A('v_fma_f32 v%d, -v%d, v%d, v%d' % (en[i], p[i], c, mn))
            A('v_fma_f32 v%d, v%d, v%d, -v%d' % (p[i], p[i], c, mx))
        for i in range(9):
            A('v_exp_f32 v%d, v%d' % (en[i], en[i]))
            A('v_exp_f32 v%d, v%d' % (p[i], p[i]))
        A('v_add_f32 v%d, v%d, v%d' % (mn, en[0], en[1]))
        A('v_add_f32 v%d, v%d, v%d' % (mx, p[0], p[1]))
        for i in range(2, 9):
            A('v_add_f32 v%d, v%d, v%d' % (mn, mn, en[i]))
            A('v_add_f32 v%d, v%d, v%d' % (mx, mx, p[i]))
        A('v_mov_b32 v%d, v%d' % (t1, mx))
        A('v_mov_b32 v%d, v%d' % (t2, mn))
        A('v_permlane16_swap_b32 v%d, v%d' % (t1, mx))
        A('v_permlane16_swap_b32 v%d, v%d' % (t2, mn))
        A('v_add_f32 v%d, v%d, v%d' % (mx, mx, t1))
        A('v_add_f32 v%d, v%d, v%d' % (mn, mn, t2))
        A('v_rcp_f32 v%d, v%d' % (mx, mx))
        A('v_rcp_f32 v%d, v%d' % (mn, mn))
        for i in range(9):
            A('v_mul_f32 v%d, v%d, v%d' % (p[i], p[i], mx))
            A('v_mul_f32 v%d, v%d, v%d' % (en[i], en[i], mn))
        A('v_cvt_pk_bf16_f32 v%d, v%d, v%d' % (p[8], p[8], en[8]))
        for i in range(4):
            A('v_cvt_pk_bf16_f32 v%d, v%d, v%d' % (p[i], p[2 * i], p[2 * i + 1]))
        for i in range(4):
            A('v_cvt_pk_bf16_f32 v%d, v%d, v%d' % (p[4 + i], en[2 * i], en[2 * i + 1]))
        return L

    for tau in range(2):
        for fn in softmax(Pk, tau):
            fn()
        p = Pk + 12 * tau
        k('ds_write_b128 v%d, %s offset:%d' % (vPm, vr(p, 4), 3584 * tau))
        k('ds_write_b128 v%d, %s offset:%d' % (vPm, vr(p + 4, 4), 3584 * tau + 16))
        k('ds_write_b32 v%d, v%d offset:%d' % (vPl, p + 8, 3584 * tau))
    k.wait_lg0()
    k('s_barrier')
    for ka in range(4):
        for e in range(2):
            k('ds_read_b64_tr_b16 %s, v%d offset:%d' % (ar(aKA + 4 * ka + 2 * e, 2), vKA, 7168 * ka + 3584 * e))
        for u in range(3):
            for e in range(2):
                k('ds_read_b64_tr_b16 %s, v%d offset:%d' % (ar(aKB + 12 * ka + 4 * u + 2 * e, 2), vKB if u < 2 else vKL, 7168 * ka + 3584 * e + (32 * u if u < 2 else 0)))

    def qstore(tau):
        p = Pq + 12 * tau
        so = '0' if tau == 0 else 's64'
        k('buffer_store_dwordx4 %s, v%d, s[56:59], %s offen' % (vr(p, 4), vQ, so))
        k('buffer_store_dwordx4 %s, v%d, s[56:59], %s offen offset:256' % (vr(p + 4, 4), vQ, so))
        k('buffer_store_dword v%d, v%d, s[60:63], %s offen' % (p + 8, vQL, '0' if tau == 0 else 's65'))
    L = softmax(Pq, 0)
    for fn in L[:30]:
        fn()
    mm = []
    for ka in range(4):
        for u in range(3):
            a = vr(kvacc + 4 * u, 4)
            mm.append(I(k, 'v_mfma_f32_16x16x32_bf16 %s, %s, %s, %s' % (a, ar(aKA + 4 * ka, 4), ar(aKB + 12 * ka + 4 * u, 4), a if ka else '0')))
    rest = L[30:]
    for i, fn in enumerate(mm):
        fn()
        for f2 in rest[3 * i:3 * i + 3]:
            f2()
    rest = rest[36:]
    for fn in rest[:12]:
        fn()
    k('v_readfirstlane_b32 s19, v%d' % vZo)
    k('s_cmp_lg_u32 s19, 0')
    k('s_cbranch_scc1 k1_go')
    k('s_mov_b32 s40, 0x100000')
    k.label('k1_spin')
    k.auto = False
    k('s_sleep 2')
    k('buffer_load_dword v%d, v%d, s[20:23], 0 offen sc0 sc1' % (vZo, vFl))
    k('s_sub_u32 s40, s40, 1')
    k('s_cbranch_scc1 k1_go')
    k('s_waitcnt vmcnt(0)')
    k('v_readfirstlane_b32 s19, v%d' % vZo)
    k('s_nop 3')
    k('s_cmp_lg_u32 s19, 0')
    k('s_cbranch_scc0 k1_spin')
    k.vm.pop()
    k.auto = True
    k.label('k1_go')
    stamp(k, 4)
    for u in range(3):
        for i in range(4):
            if u < 2:
                k('buffer_atomic_add_f32 v%d, v%d, s[52:55], 0 offen offset:%d sc1' % (kvacc + 4 * u + i, vAt[i], 1280 * u))
            else:
                k('buffer_atomic_add_f32 v%d, v%d, s[52:55], 0 offen sc1' % (kvacc + 8 + i, vAl[i]))
    for fn in rest[12:]:
        fn()
    qstore(0)
    for fn in softmax(Pq, 1):
        fn()
    qstore(1)
    stamp_end(k, 0, 14)
    k.label('k1_end')
    k('s_endpgm')
    return k, '; @launch kernel=k1_kernel grid=(256,1,1) block=(256,1,1) lds=%d' % (WP + 2048), 256
```

```python
from common import *


def k2():
    k = Kern('k2_kernel')
    V = Alloc(1, 256)
    vt = V(); vlane = V(); vL16 = V(); vT16 = V(); vT8 = V()
    vD = [V() for _ in range(4)]
    vA1 = V(); vA2 = [V() for _ in range(4)]; vAL1 = V(); vAL2 = V()
    vMk = [V() for _ in range(4)]
    vW = [V(), V()]; vW4 = [V(), V()]; vWL = [V(), V()]; vWL4 = [V(), V()]
    vWBo = V(); vWBl = V()
    vX = V(); vH = V(); vH4 = V(); vHC = V(); vHC4 = V(); vSS = V(); vMX = V(); vmean = V(); vr_ = [V(), V(), V()]
    vwb = V(6, 2)
    vx = V(10, 2)
    vBl = V(6, 2)
    vPL = V(16, 4)
    vM = V(24, 4)
    vLq = V(16, 4)
    acc = V(20, 4)
    stg = V(92, 4)
    Bo = stg
    aP = 0; aA = 128; aAL = 160; aW = 192
    WO = 47104
    k('s_cmp_ge_u32 s2, 256')
    k('s_cbranch_scc1 k2_end')
    stamp(k, 0)
    k('s_load_dwordx2 s[4:5], s[0:1], 0')
    k('s_load_dwordx2 s[6:7], s[0:1], 24')
    k('s_load_dwordx2 s[36:37], s[0:1], 80')
    k('v_lshrrev_b32 v%d, 6, v0' % vt)
    k('v_and_b32 v%d, 63, v0' % vlane)
    k('v_readfirstlane_b32 s3, v%d' % vt)
    k('v_lshlrev_b32 v%d, 4, v0' % vT16)
    k('v_lshlrev_b32 v%d, 3, v0' % vT8)
    k('v_lshlrev_b32 v%d, 4, v%d' % (vL16, vlane))
    k('s_and_b32 s38, s2, 7')
    k('s_lshr_b32 s39, s2, 3')
    k('s_and_b32 s40, s39, 7')
    k('s_lshr_b32 s39, s39, 3')
    k('s_lshl_b32 s38, s38, 1')
    k('s_and_b32 s41, s39, 1')
    k('s_add_u32 s38, s38, s41')
    k('s_lshr_b32 s39, s39, 1')
    k('s_lshl_b32 s39, s39, 4')
    k('s_add_u32 s39, s39, s38')
    k('s_lshl_b32 s39, s39, 2')
    k('s_add_u32 s39, s39, s3')
    srd(k, 8, 36, off_c=KV_OFF, nrec=KV_BYTES)
    k('s_mov_b32 s41, 0')
    for i in range(23):
        k('buffer_load_dwordx4 %s, v%d, s[8:11], s41 offen' % (vr(stg + 4 * i, 4), vT16))
        if i < 22:
            k('s_add_u32 s41, s41, 4096')
    srd(k, 12, 36, off_c=WBAR_OFF, nrec=4608)
    k('s_mul_i32 s42, s3, 144')
    k('v_add_u32 v%d, s42, v%d' % (vt, vlane))
    k('v_lshlrev_b32 v%d, 3, v%d' % (vWBo, vt))
    k('v_mul_u32_u24 v%d, 0xa0, v%d' % (vWBl, vt))
    k('v_add_u32 v%d, 0x%x, v%d' % (vWBl, WO + 144, vWBl))
    for i in range(3):
        k('buffer_load_dwordx2 %s, v%d, s[12:15], 0 offen offset:%d' % (vr(vwb + 2 * i, 2), vWBo, 512 * i))
    k('v_mul_u32_u24 v%d, 0x%x, v%d' % (vt, 6554, vlane))
    k('v_lshrrev_b32 v%d, 16, v%d' % (vt, vt))
    k('v_mul_u32_u24 v%d, 10, v%d' % (vD[1], vt))
    k('v_sub_u32 v%d, v%d, v%d' % (vD[1], vlane, vD[1]))
    k('v_mul_u32_u24 v%d, 0x480, v%d' % (vD[0], vt))
    k('v_lshl_add_u32 v%d, v%d, 4, v%d' % (vD[0], vD[1], vD[0]))
    k('s_mul_i32 s42, s3, %d' % (24 * 1152))
    k('v_add_u32 v%d, s42, v%d' % (vD[0], vD[0]))
    for i in range(1, 4):
        k('v_add_u32 v%d, 0x%x, v%d' % (vD[i], i * (6912 - 960), vD[0]))
    k('s_mul_i32 s42, s40, 144')
    k('s_sub_u32 s43, %d, s42' % (576 * 1152))
    srd(k, 16, 6, off_s=42, nrec_s=43)
    k('s_mul_i32 s44, s3, %d' % (24 * 160))
    k('s_add_u32 s44, s44, %d' % WO)
    k('s_mov_b32 s45, 0')
    k('s_lshl_b32 s42, s39, 15')
    srd(k, 20, 36, off_s=42, off_c=PHIQ_OFF, nrec=32768)
    k('s_lshl_b32 s42, s39, 12')
    srd(k, 24, 36, off_s=42, off_c=PHIL_OFF, nrec=4096)
    k('s_mov_b32 s46, 0')
    dma_last = {}

    def dma(y):
        k('s_add_u32 m0, s44, %d' % (96 * 160 * y))
        set_exec(k, lambda l: l < 60 and l % 10 != 9)
        for i in range(4):
            dma_last[y] = k('buffer_load_dwordx4 v%d, s[16:19], s45 offen offset:%d lds' % (vD[i], 960 * i))
        k('s_mov_b64 exec, -1')
        k('s_add_u32 s45, s45, %d' % (96 * 1152))

    def phi(P):
        if P % 4 == 0:
            k('buffer_load_dwordx4 %s, v%d, s[24:27], 0 offen offset:%d' % (vr(vPL + P, 4), vL16, 1024 * (P // 4)))
        for e in range(2):
            k('buffer_load_dwordx4 %s, v%d, s[20:23], s46 offen offset:%d' % (ar(aP + 8 * P + 4 * e, 4), vL16, 2048 * (P % 2) + 1024 * e))
        if P % 2 == 1:
            k('s_add_u32 s46, s46, 4096')
    stage_pairs = [[0, 1], [2, 3, 4], [5, 6, 7], [8, 9], [10, 11, 12], [13, 14, 15]]

    def stage(y):
        for P in stage_pairs[y]:
            phi(P)
        dma(y)
    for y in range(3):
        stage(y)
    g = lambda l: l >> 4
    m = lambda l: l & 15
    lanefn(k, vA1, vlane, lambda l: (g(l) >> 1) * 640 + m(l) * 32 + (g(l) & 1) * 16, 6, vt)
    lanefn(k, vX, vlane, lambda l: (g(l) >> 1) * 640 + (g(l) & 1) * 16 + 19 * 32, 6, vt)
    smask(k, 48, lambda l: m(l) % 4 == 0)
    k('v_subrev_u32 v%d, 32, v%d' % (vt, vX))
    k('v_cndmask_b32 v%d, v%d, v%d, s[48:49]' % (vX, vX, vt))
    lanefn(k, vH, vlane, lambda l: (g(l) >> 1) * 640 + (g(l) & 1) * 16 + (15 + (l & 3)) * 32, 6, vt)
    for q in range(4):
        smask(k, 48, lambda l: m(l) % 4 in (1, 2) and m(l) // 4 == q)
        k('v_cndmask_b32 v%d, v%d, v%d, s[48:49]' % (vA2[q], vX, vH))
        smask(k, 50, lambda l: g(l) == q)
        k('v_cndmask_b32 v%d, 0, -1, s[50:51]' % vMk[q])
    LB = 40960
    lanefn(k, vAL1, vlane, lambda l: LB + g(l) * 320 + m(l) * 8, 6, vt)
    lanefn(k, vX, vlane, lambda l: LB + g(l) * 320 + 19 * 8, 6, vt)
    smask(k, 48, lambda l: m(l) % 4 == 0)
    k('v_subrev_u32 v%d, 8, v%d' % (vt, vX))
    k('v_cndmask_b32 v%d, v%d, v%d, s[48:49]' % (vX, vX, vt))
    lanefn(k, vH, vlane, lambda l: LB + g(l) * 320 + (15 + (l & 3)) * 8, 6, vt)
    smask(k, 48, lambda l: m(l) % 4 in (1, 2) and m(l) // 4 == g(l))
    k('v_cndmask_b32 v%d, v%d, v%d, s[48:49]' % (vAL2, vX, vH))
    r_ = lambda l: (l >> 2) & 3
    cc = lambda l: l & 3
    lanefn(k, vW[0], vlane, lambda l: WO + (4 * g(l) + r_(l)) * 160 + 8 * cc(l), 6, vt)
    lanefn(k, vW4[0], vlane, lambda l: WO + (4 * g(l) + r_(l)) * 160 + (128, 136, 144, 144)[cc(l)], 6, vt)
    lanefn(k, vWL[0], vlane, lambda l: WO + (36 * g(l) + 16 + r_(l)) * 160 + 8 * cc(l), 6, vt)
    lanefn(k, vWL4[0], vlane, lambda l: WO + (36 * g(l) + 16 + r_(l)) * 160 + (128, 136, 144, 144)[cc(l)], 6, vt)
    for a in (vW, vW4, vWL, vWL4):
        k('v_add_u32 v%d, 0x%x, v%d' % (a[1], 46080, a[0]))
    k('s_mul_i32 s42, s39, %d' % (16 * 1152))
    k('s_mul_i32 s43, s40, 144')
    k('s_add_u32 s42, s42, s43')
    k('s_sub_u32 s43, %d, s42' % (2048 * 1152))
    srd(k, 28, 4, off_s=42, nrec_s=43)
    lanefn(k, vX, vlane, lambda l: m(l) * 1152 + 8 * g(l), 6, vt)
    for t in range(5):
        k('buffer_load_dwordx2 %s, v%d, s[28:31], 0 offen offset:%d' % (vr(vx + 2 * t, 2), vX, 32 * t))
    k('s_lshl_b32 s42, s39, 6')
    srd(k, 32, 36, off_s=42, off_c=MEANX_OFF, nrec=64)
    lanefn(k, vMX, vlane, lambda l: m(l) * 4, 6, vt)
    k('buffer_load_dword v%d, v%d, s[32:35], 0 offen' % (vMX, vMX))
    stamp(k, 1)
    for i in range(23):
        b = stg + 4 * i
        k('v_cvt_pk_bf16_f32 v%d, v%d, v%d' % (b, b, b + 1))
        k('v_cvt_pk_bf16_f32 v%d, v%d, v%d' % (b + 1, b + 2, b + 3))
        k('ds_write_b64 v%d, %s offset:%d' % (vT8, vr(b, 2), 2048 * i))
        if i in (8, 14, 20):
            stage(3 + (i - 8) // 6)
    for i in range(3):
        if i == 2:
            k('s_mov_b64 exec, 0xffff')
        k('ds_write_b64 v%d, %s offset:%d' % (vWBl, vr(vwb + 2 * i, 2), 64 * 160 * i))
        if i == 2:
            k('s_mov_b64 exec, -1')
    k('s_lshr_b32 s42, s39, 1')
    k('s_mul_i32 s42, s42, 36864')
    k('s_and_b32 s43, s39, 1')
    k('s_mul_i32 s47, s40, 4608')
    k('s_add_u32 s42, s42, s47')
    k('s_lshl_b32 s47, s43, 3')
    k('s_add_u32 s47, s47, s42')
    srd(k, 8, 36, off_s=47, off_c=H_OFF, nrec=4608)
    k('s_mul_i32 s47, s39, 18432')
    k('s_mul_i32 s42, s40, 2304')
    k('s_add_u32 s47, s47, s42')
    srd(k, 12, 36, off_s=47, off_c=HC_OFF, nrec=2304)
    k('s_and_b32 s42, s40, 1')
    k('s_sub_u32 s57, s42, 1')
    k('s_not_b32 s56, s57')
    k('s_lshl_b32 s42, s2, 6')
    srd(k, 60, 36, off_s=42, off_c=FLAG_OFF, nrec=64)
    k('v_lshlrev_b32 v%d, 2, v0' % vt)
    k('v_mov_b32 v%d, 0' % vH)
    k('buffer_store_dword v%d, v%d, s[60:63], 0 offen' % (vH, vt))
    k('s_lshl_b32 s42, s39, 9')
    k('s_lshl_b32 s43, s40, 2')
    k('s_add_u32 s42, s42, s43')
    srd(k, 52, 36, off_s=42, off_c=SSQ_OFF, nrec=512)
    k('v_mov_b32 v%d, 0x%x' % (vWBo, BIG))
    k('v_mov_b32 v%d, v%d' % (vH, vL16))
    k('v_add_u32 v%d, 0x1000, v%d' % (vt, vL16))
    smask(k, 48, lambda l: g(l) < 2)
    k('v_cndmask_b32 v%d, v%d, v%d, s[48:49]' % (vH4, vWBo, vt))
    smask(k, 50, lambda l: g(l) == 0)
    k('v_add_u32 v%d, 0x800, v%d' % (vt, vL16))
    k('v_cndmask_b32 v%d, v%d, v%d, s[50:51]' % (vHC4, vWBo, vt))
    k('v_lshlrev_b32 v%d, 5, v%d' % (vt, vlane))
    k('v_cndmask_b32 v%d, v%d, v%d, s[50:51]' % (vSS, vWBo, vt))
    lanefn(k, vHC, vlane, lambda l: (2 * (g(l) & 1) + (g(l) >> 1)) * 256 + m(l) * 16, 6, vt)
    k.wait_lg0()
    stamp(k, 2)
    k('s_barrier')
    stamp(k, 3)
    for blk in range(4):
        for e in range(2):
            b = aAL + 8 * blk + 4 * e
            k('ds_read_b64 %s, v%d offset:%d' % (ar(b, 2), vAL1, 1280 * blk + 160 * e))
            k('ds_read_b64 %s, v%d offset:%d' % (ar(b + 2, 2), vAL2, 1280 * blk + 160 * e))

    slots = []
    for P in range(16):
        for e in range(2):
            slots += [('o', 2 * P + e, j) for j in range(4)]
        if P >= 1:
            slots += [('g', P - 1, t) for t in range(5)]
        if P == 9:
            slots += [('g', 16, t) for t in range(5)]
    slots += [('g', 15, t) for t in range(5)] + [('g', 17, t) for t in range(5)]
    N = len(slots)
    pos = {s: n for n, s in enumerate(slots)}
    sc = Sched(N)
    stage_of = {P: y for y, ps in enumerate(stage_pairs) for P in ps}
    stage_of[16] = 2
    stage_of[17] = 5
    bpos = {}
    gl = [s for s in slots if s[0] == 'g']
    for s in gl:
        y = stage_of[s[1]]
        if y not in bpos:
            bpos[y] = max(0, pos[s] - 6)

            def fn(y=y):
                k.wait_vm(dma_last[y])
                k('s_barrier')
            sc.at(bpos[y], fn)
    for h in range(32):
        b = aA + 8 * (h % 4)
        p = pos[('o', h, 0)] - (16 if h >= 2 else 100)
        sc.at(p, I(k, 'ds_read_b128 %s, v%d offset:%d' % (ar(b, 4), vA1, 1280 * h)))
        sc.at(p, I(k, 'ds_read_b128 %s, v%d offset:%d' % (ar(b + 4, 4), vA2[(h // 2) % 4], 1280 * h)))
        P, e = h // 2, h % 2
        bl = vBl + 2 * (h % 3)
        p = pos[('o', h, 0)]
        sc.at(p, I(k, 'v_and_b32 v%d, v%d, v%d' % (bl, vPL + 4 * (P // 4) + 2 * e, vMk[P % 4])))
        sc.at(p, I(k, 'v_and_b32 v%d, v%d, v%d' % (bl + 1, vPL + 4 * (P // 4) + 2 * e + 1, vMk[P % 4])))
        M1 = vM + 8 * (h % 3)
        M2 = M1 + 4
        rr = vr_[h % 3]
        lq = vLq + 8 * (P // 8) + 4 * ((P // 4) % 2) + 2 * e
        e_ = [I(k, 'v_add_f32 v%d, %s, v%d' % (rr, f32(1e-6), M2)),
              I(k, 'v_rcp_f32 v%d, v%d' % (rr, rr))]
        for i in range(4):
            e_.append(I(k, 'v_mul_f32 v%d, v%d, v%d' % (M1 + i, M1 + i, rr)))
        for i in range(2):
            if P % 4 == 0:
                e_.append(I(k, 'v_mul_f32 v%d, v%d, v%d' % (lq + i, M2 + 1 + i, rr)))
            else:
                e_.append(I(k, 'v_fmac_f32 v%d, v%d, v%d' % (lq + i, M2 + 1 + i, rr)))
        e_.append(I(k, 'v_cvt_pk_bf16_f32 v%d, v%d, v%d' % (Bo + 4 * P + 2 * e, M1, M1 + 1)))
        e_.append(I(k, 'v_cvt_pk_bf16_f32 v%d, v%d, v%d' % (Bo + 4 * P + 2 * e + 1, M1 + 2, M1 + 3)))
        if h in (15, 31):
            Q = h // 16
            for i in range(4):
                e_.append(I(k, 'v_cvt_pk_bf16_f32 v%d, v%d, v%d' % (Bo + 64 + 4 * Q + i, vLq + 8 * Q + 2 * i, vLq + 8 * Q + 2 * i + 1)))
        p0 = pos[('o', h, 3)] + 3
        if h == 31:
            for fn in e_:
                sc.at(p0, fn)
        else:
            sc.spread(p0, p0 + 4, e_)
    for n, s in enumerate(gl):
        _, ks, t = s
        r = aW + 4 * (n % 8)
        if ks < 16:
            base = (vW if t < 4 else vW4)[ks // 8]
            o1 = 36 * (ks % 8) * 160 + (32 * t if t < 4 else 0)
            o2 = o1 + 20 * 160
        else:
            base = (vWL if t < 4 else vWL4)[ks - 16]
            o1 = (32 * t if t < 4 else 0)
            o2 = o1 + 144 * 160
        p = max(pos[s] - 6, bpos[stage_of[ks]])
        sc.at(p, I(k, 'ds_read_b64_tr_b16 %s, v%d offset:%d' % (ar(r, 2), base, o1)))
        sc.at(p, I(k, 'ds_read_b64_tr_b16 %s, v%d offset:%d' % (ar(r + 2, 2), base, o2)))
    gidx = {s: n for n, s in enumerate(gl)}

    def slot(n):
        s = slots[n]
        if s[0] == 'o':
            _, h, j = s
            P, e = h // 2, h % 2
            M = vr(vM + 8 * (h % 3) + 4 * (j % 2), 4)
            if j < 2:
                k('v_mfma_f32_16x16x32_bf16 %s, %s, %s, 0' % (M, ar(aA + 8 * (h % 4) + 4 * j, 4), ar(aP + 4 * h, 4)))
            else:
                k('v_mfma_f32_16x16x16_bf16 %s, %s, %s, %s' % (M, ar(aAL + 8 * (P // 4) + 4 * e + 2 * (j - 2), 2), vr(vBl + 2 * (h % 3), 2), M))
        else:
            _, ks, t = s
            a = vr(acc + 4 * t, 4)
            k('v_mfma_f32_16x16x32_bf16 %s, %s, %s, %s' % (a, ar(aW + 4 * (gidx[s] % 8), 4), vr(Bo + 4 * ks, 4), '0' if ks == 0 else a))
    sc.run(slot)
    stamp(k, 4)
    T4 = acc + 16
    k('v_add_f32 v%d, v%d, v%d' % (vmean, T4, T4 + 1))
    k('v_mov_b32 v%d, v%d' % (vt, vmean))
    k('v_permlane32_swap_b32 v%d, v%d' % (vt, vmean))
    k('v_add_f32 v%d, v%d, v%d' % (vmean, vmean, vMX))
    hq = vM
    cq = vM + 12
    ss = vr_[0]
    for t in range(5):
        for i in range(4):
            a = acc + 4 * t + i
            src = vx + 2 * t + i // 2
            if i % 2 == 0:
                k('v_lshlrev_b32 v%d, 16, v%d' % (vt, src))
            else:
                k('v_and_b32 v%d, 0xffff0000, v%d' % (vt, src))
            k('v_add_f32 v%d, v%d, v%d' % (a, a, vt))
        a = acc + 4 * t
        k('v_cvt_pk_bf16_f32 v%d, v%d, v%d' % (hq + 2 * t, a, a + 1))
        k('v_cvt_pk_bf16_f32 v%d, v%d, v%d' % (hq + 2 * t + 1, a + 2, a + 3))
        k('buffer_store_dwordx2 %s, v%d, s[8:11], 0 offen offset:%d' % (vr(hq + 2 * t, 2), vH if t < 4 else vH4, 1024 * (t % 4)))
        for i in range(4):
            k('v_sub_f32 v%d, v%d, v%d' % (a + i, a + i, vmean))
        k('v_cvt_pk_bf16_f32 v%d, v%d, v%d' % (cq + 2 * t, a, a + 1))
        k('v_cvt_pk_bf16_f32 v%d, v%d, v%d' % (cq + 2 * t + 1, a + 2, a + 3))
        if t == 4:
            k('v_mov_b32 v%d, v%d' % (cq + 10, cq + 8))
            k('v_mov_b32 v%d, v%d' % (cq + 11, cq + 9))
        if t % 2 == 1 or t == 4:
            b = cq + 4 * (t // 2)
            k('v_permlane16_swap_b32 v%d, v%d' % (b, b + 2))
            k('v_permlane16_swap_b32 v%d, v%d' % (b + 1, b + 3))
            k('s_mov_b64 exec, s[56:57]')
            k('v_swap_b32 v%d, v%d' % (b, b + 2))
            k('v_swap_b32 v%d, v%d' % (b + 1, b + 3))
            k('s_mov_b64 exec, -1')
            k('buffer_store_dwordx4 %s, v%d, s[12:15], 0 offen offset:%d' % (vr(b, 4), vHC if t < 4 else vHC4, 1024 * (t // 2) if t < 4 else 0))
        tgt = ss if t < 4 else vr_[1]
        for i in range(4):
            if i == 0 and t in (0, 4):
                k('v_mul_f32 v%d, v%d, v%d' % (tgt, a, a))
            else:
                k('v_fmac_f32 v%d, v%d, v%d' % (tgt, a + i, a + i))
    k('v_cndmask_b32 v%d, 0, v%d, s[48:49]' % (vr_[1], vr_[1]))
    k('v_add_f32 v%d, v%d, v%d' % (ss, ss, vr_[1]))
    k('v_mov_b32 v%d, v%d' % (vt, ss))
    k('v_permlane16_swap_b32 v%d, v%d' % (vt, ss))
    k('v_add_f32 v%d, v%d, v%d' % (ss, ss, vt))
    k('v_mov_b32 v%d, v%d' % (vt, ss))
    k('v_permlane32_swap_b32 v%d, v%d' % (vt, ss))
    k('v_add_f32 v%d, v%d, v%d' % (ss, ss, vt))
    k('buffer_store_dword v%d, v%d, s[52:55], 0 offen' % (ss, vSS))
    stamp_end(k, 1, 36)
    k.label('k2_end')
    k('s_endpgm')
    return k, '; @launch kernel=k2_kernel grid=(256,1,1) block=(256,1,1) lds=%d' % (WO + 92160), 256
```

```python
from common import *
from k1 import wave_sel

U = 9216
SLOT = 4 * U


def k34(P=None):
    P = dict(P or {})
    k = Kern('k3_kernel')
    vt = 1; vL16 = 2; vB = [2, 3, 4, 5]; vD = list(range(6, 15)); vA = [[15, 16], [17, 18]]
    c1 = 19; c2 = 23; vL8 = 27; vFl = 28; vFs = 29; vP = 30; vOne = 31
    vW = [3, 4, 5]
    HH = 32; T0R = 96; ACB = 96; TMP = 240
    aA = 128; RA = 8; aB = 160; NB = 6
    g = lambda l: l >> 4
    r_ = lambda l: (l >> 2) & 3
    cc = lambda l: l & 3

    def accA(t, mat, tau):
        if t < 5:
            return vr(T0R + 32 * t + 16 * mat + 4 * tau, 4)
        return ar(32 * (t - 5) + 16 * mat + 4 * tau, 4)

    k('s_cmp_ge_u32 s2, 256')
    k('s_cbranch_scc1 k3_end')
    stamp(k, 0)
    k('s_load_dwordx4 s[4:7], s[0:1], 40')
    k('s_load_dwordx2 s[24:25], s[0:1], 80')
    k('s_load_dwordx2 s[50:51], s[0:1], 56')
    k('v_lshrrev_b32 v%d, 6, v0' % vt)
    k('v_and_b32 v%d, 63, v0' % vP)
    k('v_readfirstlane_b32 s3, v%d' % vt)
    k('v_lshlrev_b32 v%d, 4, v%d' % (vL16, vP))
    k('v_mul_u32_u24 v%d, 0x%x, v%d' % (vOne, 3641, vP))
    k('v_add_u32 v%d, 0x1000, v%d' % (vB[1], vL16))
    k('v_add_u32 v%d, 0x2000, v%d' % (vB[2], vL16))
    k('s_movk_i32 s38, %d' % (9216 - 288))

    def mk_vD(i, lane3641, l16, smul):
        L = []
        L.append(I(k, 'v_add_u32 v%d, 0x%x, v%d' % (vD[i], 64 * i * 3641, lane3641)))
        L.append(I(k, 'v_lshrrev_b32 v%d, 16, v%d' % (vD[i], vD[i])))
        L.append(I(k, 'v_mad_u32_u24 v%d, v%d, s%d, v%d' % (vD[i], vD[i], smul, l16[i // 4])))
        return L
    for i in range(9):
        for fn in mk_vD(i, vOne, vB, 38):
            fn()
    k('s_and_b32 s26, s2, 7')
    k('s_lshr_b32 s27, s2, 3')
    k('s_and_b32 s28, s27, 3')
    k('s_lshr_b32 s27, s27, 2')
    k('s_mul_i32 s34, s3, %d' % U)
    k('s_mul_i32 s36, s26, 1152')
    k('s_mul_i32 s37, s28, 288')
    k('s_add_u32 s36, s36, s37')
    k('s_and_b32 s37, s3, 1')
    k('s_mul_i32 s37, s37, %d' % (32 * 9216))
    k('s_add_u32 s36, s36, s37')
    k('s_sub_u32 s37, %d, s36' % (576 * 9216))
    k('s_cmp_lt_u32 s3, 2')
    k('s_cselect_b32 s4, s4, s6')
    k('s_cselect_b32 s5, s5, s7')
    srd(k, 8, 4, off_s=36, nrec_s=37)
    k('s_mov_b32 s35, 0')
    k('s_lshl_b32 s30, s27, 2')
    k('s_add_u32 s30, s30, s3')
    k('s_mul_i32 s36, s30, %d' % (4 * 18432))
    srd(k, 12, 24, off_s=36, off_c=HC_OFF, nrec=4 * 18432)

    dma_last = {}

    def dma_list(key, slot, sd, soff, n=9, post=None):
        L = []
        for i in range(n):
            def fn(i=i):
                if i % 4 == 0:
                    k('s_add_u32 m0, %s, %d' % ('s34' if n == 9 else 's39', slot * SLOT + 4096 * (i // 4)))
                if n == 5 and i == 4:
                    k('s_mov_b32 exec_hi, 0')
                dma_last[key] = k('buffer_load_dwordx4 v%d, s[%d:%d], s%d offen offset:%d lds' % (vD[i], sd, sd + 3, soff, 1024 * (i % 4)))
                if n == 5 and i == 4:
                    k('s_mov_b32 exec_hi, -1')
                if i == n - 1 and post:
                    post()
            L.append(fn)
        return L

    def wdma(c):
        return dma_list('c%d' % c, c % 3, 8, 35, post=lambda: k('s_add_u32 s35, s35, %d' % (64 * 9216)))

    def bload(s, tau):
        def fn():
            k('buffer_load_dwordx4 %s, v%d, s[12:15], s%d offen offset:%d' % (ar(aB + 16 * (s % NB) + 4 * tau, 4), vB[tau], 40 + s // 4, (s % 4) * 1024))
        return fn
    for fn in wdma(0):
        fn()
    for i in range(1, 4):
        k('v_add_u32 v%d, 0x%x, v%d' % (vB[i], 18432 * i, vL16))
    for n in range(5):
        k('s_movk_i32 s%d, %d' % (40 + n, 4096 * n))
    for s in range(2):
        for tau in range(4):
            bload(s, tau)()
    for fn in wdma(1):
        fn()
    lanefn(k, vA[0][0], vP, lambda l: (8 * g(l) + 4 * (g(l) & 1) + r_(l)) * 288 + cc(l) * 8, 6, vt)
    lanefn(k, vA[0][1], vP, lambda l: (8 * g(l) + 4 * (1 - (g(l) & 1)) + r_(l)) * 288 + cc(l) * 8, 6, vt)
    for i in range(2):
        k('v_add_u32 v%d, 0x%x, v%d' % (vA[1][i], 2 * SLOT, vA[0][i]))
    k('v_lshlrev_b32 v%d, 3, v%d' % (vL8, vP))
    lanefn(k, vFs, vP, lambda l: (l & 15) * 32 + g(l) * 8, 6, vt)
    lanefn(k, vFl, vP, lambda l: (4 * g(l) + r_(l)) * 288 + cc(l) * 8, 6, vt)
    k('v_mov_b32 v%d, v%d' % (HH + 16, vP))
    k('v_mov_b32 v%d, v%d' % (HH + 17, vOne))
    k('v_mov_b32 v%d, v%d' % (HH + 18, vFl))
    vLane = HH + 16; vL3641 = HH + 17; vWb = HH + 18

    groups = []
    ordA = [(s, t) for s in range(14) for t in range(9)]
    ordA += [(14, 0), (15, 0), (14, 1), (15, 1), (16, 0), (17, 0), (16, 1), (17, 1)]
    ordA += [(s, t) for t in range(2, 9) for s in range(14, 18)]
    finalA = {}
    firstS = {}
    lastS = {}
    for (s, t) in ordA:
        c = s // 2
        sl = c % 3
        for mat in range(2):
            off = (sl % 2) * SLOT + mat * 2 * U + (s % 2) * U + 32 * t
            firstS.setdefault(s, len(groups))
            lastS[s] = len(groups)
            groups.append(dict(bar='c%d' % c, b1=vA[sl // 2][0], o1=off, b2=vA[sl // 2][1], o2=off,
                               mf=[(accA(t, mat, tau), ar(aB + 16 * (s % NB) + 4 * tau, 4), s == 0) for tau in range(4)]))
        if s == 17:
            finalA[t] = len(groups)
    gT0 = len(groups)
    ksB = [(0, 0), (0, 1), (0, 2), (1, 0), (1, 1), (2, 0), (2, 1), (3, 0), (3, 1), (0, 3), (1, 2), (2, 2), (3, 2), (1, 3), (2, 3), (3, 3), (0, 4), (2, 4)]
    G = {1: [(0, 0), (0, 1), (0, 2), (0, 3)], 2: [(1, 0), (1, 1), (2, 0), (2, 1)], 3: [(3, 0), (3, 1), (1, 2), (2, 2)], 4: [(3, 2), (1, 3), (2, 3), (3, 3)]}
    gslot = {1: 3, 2: 0, 3: 1, 4: 2, 5: 3}
    wreg = {3: vW[0], 0: vW[1], 1: vW[2], 2: vW[1]}
    where = {}
    for gi, L in G.items():
        for u, ks in enumerate(L):
            where[ks] = (gi, u)
    where[(0, 4)] = (5, 0); where[(2, 4)] = (5, 1)

    def bfrag(q, s, tau):
        if s == 4:
            return ar(96 + 8 * q + 4 * tau, 4)
        if q == 0:
            return vr(HH + 16 * s + 4 * tau, 4)
        if s < 2:
            return ar(aB + 16 * (2 * (q - 1) + s) + 4 * tau, 4)
        return ar(16 * (3 * (s - 2) + q - 1) + 4 * tau, 4)
    SB = P.get('SB', 4)
    ordB = [(ks, t) for ks in ksB[:-SB] for t in range(9)] + [(ks, t) for t in range(9) for ks in ksB[-SB:]]
    firstB = {}
    finalB = {}
    for (ks, t) in ordB:
        gi, u = where[ks]
        off = u * U + 32 * t
        firstB.setdefault(ks, len(groups))
        b = wreg[gslot[gi]]
        groups.append(dict(bar='g%d' % gi, b1=b, o1=off, b2=b, o2=off + 16 * 288,
                           mf=[(vr(ACB + 16 * t + 4 * tau, 4), bfrag(ks[0], ks[1], tau), ks == (0, 0)) for tau in range(4)]))
        if ks == ksB[-1]:
            finalB[t] = len(groups)
    NG = len(groups)
    N = 4 * NG
    sc = Sched(N)
    D = P.get('D', 6); D2 = P.get('D2', 3)
    bfirst = {}
    for i, gr in enumerate(groups):
        bfirst.setdefault(gr['bar'], i)
    bpos = {b: max(0, 4 * (i - D2)) for b, i in bfirst.items()}
    stampat = {'c0': 1, 'c7': 2, 'g1': 3, 'g4': 4}

    def barrier(b):
        def fn():
            k.wait_lg0()
            k.wait_vm(dma_last[b])
            k('s_barrier')
            if b in stampat:
                stamp(k, stampat[b])
        return fn
    for b in bpos:
        sc.at(bpos[b], barrier(b))
    for i, gr in enumerate(groups):
        p = max(4 * (i - D), bpos[gr['bar']])
        r = aA + 4 * (i % RA)
        sc.at(p, I(k, 'ds_read_b64_tr_b16 %s, v%d offset:%d' % (ar(r, 2), gr['b1'], gr['o1'])))
        sc.at(p + (2 if p == 4 * (i - D) else 0), I(k, 'ds_read_b64_tr_b16 %s, v%d offset:%d' % (ar(r + 2, 2), gr['b2'], gr['o2'])))
    early = wdma(2)
    for s in range(2, 6):
        early += [bload(s, tau) for tau in range(4)]
    sc.spread(3, 130, early)
    for c in range(1, 7):
        sc.spread(bpos['c%d' % c] + 15, bpos['c%d' % c] + 85, wdma(c + 2))
    for s in range(6, 18):
        p = 4 * (lastS[s - 6] + 1)
        sc.spread(p + 1, p + 60, [bload(s, tau) for tau in range(4)])
    L = []
    A = lambda t: L.append(I(k, t))

    def srdl(*a, **kw):
        L.append(lambda: srd(k, *a, **kw))
    A('s_lshl_b32 s36, s30, 11')
    srdl(16, 24, off_s=36, off_c=SSQ_OFF, nrec=2048)
    for tau in range(4):
        A('buffer_load_dwordx2 %s, v%d, s[16:19], 0 offen offset:%d' % (vr(HH + 2 * tau, 2), vFs, 512 * tau))
    A('s_lshl_b32 s31, s26, 3')
    A('s_add_u32 s31, s31, s27')
    A('s_mul_i32 s36, s31, %d' % (16 * 18432))
    A('s_mul_i32 s37, s3, 18432')
    A('s_add_u32 s36, s36, s37')
    srdl(20, 24, off_s=36, off_c=HH_OFF, nrec=13 * 18432)
    A('s_lshl_b32 s36, s31, 8')
    A('s_lshl_b32 s37, s3, 6')
    A('s_add_u32 s36, s36, s37')
    srdl(56, 24, off_s=36, off_c=FLAG_OFF, nrec=64)
    A('s_mul_i32 s36, s26, %d' % (576 * 1152))
    A('s_mul_i32 s37, s28, 288')
    A('s_add_u32 s36, s36, s37')
    A('s_sub_u32 s37, %d, s36' % (4608 * 1152))
    srdl(52, 50, off_s=36, nrec_s=37)
    A('s_mul_i32 s36, s26, %d' % (64 * 36864))
    A('s_mul_i32 s37, s30, %d' % (2 * 36864))
    A('s_add_u32 s36, s36, s37')
    A('s_mul_i32 s37, s28, 9216')
    A('s_add_u32 s36, s36, s37')
    srdl(60, 24, off_s=36, off_c=PART_OFF, nrec=36864 + 9216)
    for q in range(4):
        A('s_add_u32 s36, s28, %d' % q)
        A('s_and_b32 s36, s36, 3')
        A('s_mul_i32 s%d, s36, %d' % (64 + q, 4 * 18432))
        A('s_mul_i32 s%d, s36, %d' % (68 + q, 144 * 1152))
    for gi in range(1, 6):
        Lg = G[gi] if gi < 5 else [(q, 4) for q in range(4)]
        A('s_add_u32 s%d, s%d, %d' % (72 + gi, 68 + Lg[3][0], Lg[3][1] * 32 * 1152))
        for w in range(3):
            A('s_add_u32 s36, s%d, %d' % (68 + Lg[w][0], Lg[w][1] * 32 * 1152))
            A('s_cmp_eq_u32 s3, %d' % w)
            A('s_cselect_b32 s%d, s36, s%d' % (72 + gi, 72 + gi))
    A('s_mul_i32 s39, s3, 4608')
    A('s_movk_i32 s38, %d' % (1152 - 288))
    sc.spread(150, 280, L)
    L = []
    for tau in range(4):
        x = HH + 2 * tau
        A('v_add_f32 v%d, v%d, v%d' % (x, x, x + 1))
        A('v_mov_b32 v%d, v%d' % (x + 1, x))
        A('v_permlane16_swap_b32 v%d, v%d' % (x + 1, x))
        A('v_add_f32 v%d, v%d, v%d' % (x, x, x + 1))
        A('v_mov_b32 v%d, v%d' % (x + 1, x))
        A('v_permlane32_swap_b32 v%d, v%d' % (x + 1, x))
        A('v_add_f32 v%d, v%d, v%d' % (x, x, x + 1))
        A('v_mov_b32 v%d, %s' % (c2 + tau, f32(1e-5)))
        A('v_fmac_f32 v%d, %s, v%d' % (c2 + tau, f32(1.0 / 576), x))
        A('v_rsq_f32 v%d, v%d' % (c1 + tau, c2 + tau))
        A('v_mul_f32 v%d, %s, v%d' % (c1 + tau, f32(-LOG2E), c1 + tau))
    A('v_and_b32 v%d, 3, v%d' % (vFl, vLane))
    A('v_lshlrev_b32 v%d, 2, v%d' % (vFl, vFl))
    A('s_lshl_b32 s36, s28, 2')
    A('v_mov_b32 v%d, s36' % vFs)
    A('v_mov_b32 v%d, 0x%x' % (vt, BIG))
    A('v_cmp_eq_u32 vcc, 0, v%d' % vLane)
    A('v_cndmask_b32 v%d, v%d, v%d, vcc' % (vFs, vt, vFs))
    A('v_mov_b32 v%d, 1' % vOne)
    A('v_add_u32 v%d, 0x1000, v%d' % (HH + 20, vL16))
    A('v_add_u32 v%d, 0x2000, v%d' % (HH + 21, vL16))
    sc.spread(500, 600, L)
    L = []
    for i in range(9):
        L += mk_vD(i, vL3641, [vL16, HH + 20, HH + 21], 38)
    A('v_add_u32 v%d, 0x%x, v%d' % (vW[0], 3 * SLOT, vWb))
    A('v_mov_b32 v%d, v%d' % (vW[1], vWb))
    A('v_add_u32 v%d, 0x%x, v%d' % (vW[2], SLOT, vWb))
    p = max(bpos['c6'] + 90, 4 * (lastS[11] + 1) + 62)
    sc.spread(p, bpos['c7'], L)
    sc.spread(bpos['c7'] + 14, bpos['c7'] + 60, dma_list('g1', 3, 52, 73))
    sc.spread(bpos['c7'] + 60, bpos['c7'] + 110, dma_list('g2', 0, 52, 74))
    sc.spread(bpos['g1'] + 14, bpos['g1'] + 60, dma_list('g3', 1, 52, 75))
    sc.spread(bpos['g1'] + 60, bpos['g1'] + 110, dma_list('g4', 2, 52, 76))
    sc.at(4 * firstB[(3, 0)], I(k, 'v_add_u32 v%d, 0x%x, v%d' % (vW[1], 2 * SLOT, vW[1])))
    sc.spread(bpos['g3'] + 14, bpos['g3'] + 40, dma_list('g5', 3, 52, 77, n=5))

    st_id = {}

    def epi(t):
        L = []
        A = lambda s: L.append(I(k, s))
        j, half = t // 2, t % 2
        for tau in range(4):
            if t < 5:
                gg = T0R + 32 * t + 4 * tau
                uu = gg + 16
            else:
                gg = TMP + 8 * (tau % 2)
                uu = gg + 4
                a = 32 * (t - 5) + 4 * tau
                for i in range(4):
                    A('v_accvgpr_read_b32 v%d, a%d' % (gg + i, a + i))
                for i in range(4):
                    A('v_accvgpr_read_b32 v%d, a%d' % (uu + i, a + 16 + i))
            for i in range(4):
                A('v_mul_f32 v%d, v%d, v%d' % (uu + i, gg + i, uu + i))
                A('v_mul_f32 v%d, v%d, v%d' % (gg + i, gg + i, c1 + tau))
            for i in range(4):
                A('v_exp_f32 v%d, v%d' % (gg + i, gg + i))
            for i in range(4):
                A('v_fma_f32 v%d, v%d, v%d, v%d' % (gg + i, gg + i, c2 + tau, c2 + tau))
            for i in range(4):
                A('v_rcp_f32 v%d, v%d' % (gg + i, gg + i))
            for i in range(4):
                A('v_mul_f32 v%d, v%d, v%d' % (uu + i, uu + i, gg + i))
            d = HH + 16 * j + 4 * tau + 2 * half if t < 8 else gg
            A('v_cvt_pk_bf16_f32 v%d, v%d, v%d' % (d, uu, uu + 1))
            A('v_cvt_pk_bf16_f32 v%d, v%d, v%d' % (d + 1, uu + 2, uu + 3))
            if t == 8:
                A('v_accvgpr_write_b32 a%d, v%d' % (96 + 4 * tau, d))
                A('v_accvgpr_write_b32 a%d, v%d' % (97 + 4 * tau, d + 1))
                if tau == 0:
                    A('s_add_u32 s36, s64, 16384')

                def fn(tau=tau, d=d):
                    st_id[t] = k('buffer_store_dwordx2 %s, v%d, s[20:23], s36 offen offset:%d sc0 sc1' % (vr(d, 2), vL8, 512 * tau))
                L.append(fn)
            elif half == 1:
                if tau == 0:
                    A('s_add_u32 s36, s64, %d' % (4096 * j))

                def fn(tau=tau):
                    st_id[t] = k('buffer_store_dwordx4 %s, v%d, s[20:23], s36 offen offset:%d sc0 sc1' % (vr(HH + 16 * j + 4 * tau, 4), vL16, 1024 * tau))
                L.append(fn)
        return L
    nT0 = 4 * gT0
    e0 = 4 * finalA[0] + 3
    eend = {}
    L = []
    marks = []
    for t in range(5):
        L += epi(t)
        marks.append(len(L))
    sc.spread(e0, nT0, L)
    for t in range(5):
        eend[t] = e0 + (marks[t] * (nT0 - e0)) // len(L)
        assert e0 + ((marks[t - 1] if t else 0) * (nT0 - e0)) // len(L) >= 4 * finalA[t], t
    EP = P.get('EP', [0, 72, 144, 216, 324])
    for t in range(5, 9):
        sc.spread(nT0 + EP[t - 5], nT0 + EP[t - 4], epi(t))
        eend[t] = nT0 + EP[t - 4]
    assert eend[5] <= 4 * firstB[(0, 2)] and eend[7] <= 4 * firstB[(0, 3)]

    stages = [(3, [(q, s) for q in (1, 2, 3) for s in (0, 1)]), (5, [(q, 2) for q in (1, 2, 3)]), (7, [(q, 3) for q in (1, 2, 3)]), (8, [(q, 4) for q in (1, 2, 3)])]
    FD = P.get('FD', [60, 60, 60, 60])
    PD = P.get('PD', [50, 50, 50, 50])
    CD = P.get('CD', [40, 40, 40, 40])
    LD = P.get('LD', [60, 40, 40, 30])
    for si, (t, L2) in enumerate(stages):
        pf = eend[t] + FD[si]

        def flag(si=si, t=t):
            k.wait_vm(st_id[t])
            k('buffer_store_dword v%d, v%d, s[56:59], 0 offen offset:%d sc0 sc1' % (vOne, vFs, 16 * si))
        sc.at(pf, flag)
        poll = 'buffer_load_dword v%d, v%d, s[56:59], 0 offen offset:%d sc0 sc1' % (vP, vFl, 16 * si)
        sc.at(pf + PD[si], I(k, poll))

        def check(si=si, poll=poll):
            k('v_cmp_eq_u32 vcc, 0, v%d' % vP)
            k('s_cbranch_vccz k3_go%d' % si)
            k('s_mov_b32 s78, 0x100000')
            k.label('k3_spin%d' % si)
            k.auto = False
            k('s_sleep 1')
            k(poll)
            k('s_sub_u32 s78, s78, 1')
            k('s_cbranch_scc1 k3_go%d' % si)
            k('s_waitcnt vmcnt(0)')
            k('v_cmp_eq_u32 vcc, 0, v%d' % vP)
            k('s_nop 4')
            k('s_cbranch_vccnz k3_spin%d' % si)
            k.vm.pop()
            k.auto = True
            k.label('k3_go%d' % si)
        pc = pf + PD[si] + CD[si]
        sc.at(pc, check)
        L = []
        for (q, s) in L2:
            L.append(I(k, 's_add_u32 s37, s%d, %d' % (64 + q, 4096 * s)))
            for tau in range(4):
                if s < 4:
                    L.append(I(k, 'buffer_load_dwordx4 %s, v%d, s[20:23], s37 offen offset:%d sc0 sc1' % (bfrag(q, s, tau), vL16, 1024 * tau)))
                else:
                    a = 96 + 16 * (q // 2) + 4 * tau + 2 * (q % 2)
                    L.append(I(k, 'buffer_load_dwordx2 %s, v%d, s[20:23], s37 offen offset:%d sc0 sc1' % (ar(a, 2), vL8, 512 * tau)))
        sc.spread(pc, pc + LD[si], L)
        need = min(4 * firstB[(q if s < 4 else q & 2, s)] for q, s in L2)
        print('stage', si, 'flag', pf - nT0, 'check', pc - nT0, 'need', need - nT0)
        if si == 0:
            assert pc >= 4 * (lastS[17] + 1), 'B ring still in use'
        if si == 1:
            assert pc >= eend[6]
    for n in range(3):
        sc.at(nT0 + 400, I(k, 's_movk_i32 s%d, %d' % (40 + n, 4096 * n)))
        sc.at(nT0 + 401, I(k, 's_mov_b32 s%d, %d' % (44 + n, 36864 + 4096 * n)))
    for t in range(9):
        L = []
        for pr in range(2):
            a = ACB + 16 * t + 8 * pr
            for i in range(4):
                L.append(I(k, 'v_cvt_pk_bf16_f32 v%d, v%d, v%d' % (a + i, a + 2 * i, a + 2 * i + 1)))
            L.append(I(k, 'buffer_store_dwordx4 %s, v%d, s[60:63], s%d offen offset:%d%s' % (vr(a, 4), vL16, 40 + 4 * pr + t // 4, (t % 4) * 1024, P.get('pst', ' sc0 sc1'))))
        p0 = 4 * finalB[t] + 3
        sc.spread(p0, p0 + 10, L)

    def slot(n):
        gr = groups[n // 4]
        a, b, z = gr['mf'][n % 4]
        k('v_mfma_f32_16x16x32_bf16 %s, %s, %s, %s' % (a, ar(aA + 4 * ((n // 4) % RA), 4), b, '0' if z else a))
    sc.run(slot)
    stamp_end(k, 2, 24)
    k.label('k3_end')
    k('s_endpgm')
    return k, '; @launch kernel=k3_kernel grid=(256,1,1) block=(256,1,1) lds=%d' % (4 * SLOT), 256
```

```python
from common import *


def k3(st_flags=''):
    k = Kern('k3_kernel')
    V = Alloc(1, 168)
    vt = V(); vlane = V(); vA = [V(), V()]; vD = [V() for _ in range(5)]; vL16 = V(); vc1 = V(); vc2 = V(); vHH = V()
    vs = V(8, 2)
    acc = 24
    RA = 8; aA = 0; NB = 14; aB = 32
    SLOT = 37120
    k('s_cmp_ge_u32 s2, 256')
    k('s_cbranch_scc1 k3_end')
    stamp(k, 0)
    k('s_load_dwordx4 s[4:7], s[0:1], 40')
    k('s_load_dwordx2 s[24:25], s[0:1], 80')
    k('v_lshrrev_b32 v%d, 6, v0' % vt)
    k('v_and_b32 v%d, 63, v0' % vlane)
    k('v_readfirstlane_b32 s3, v%d' % vt)
    k('s_and_b32 s26, s2, 7')
    k('s_lshr_b32 s27, s2, 3')
    k('s_and_b32 s28, s27, 3')
    k('s_lshr_b32 s27, s27, 2')
    k('s_mul_i32 s29, s26, 36')
    k('s_mul_i32 s30, s28, 9')
    k('s_add_u32 s29, s29, s30')
    k('s_lshl_b32 s30, s27, 3')
    k('s_add_u32 s30, s30, s3')
    for n in range(1, 9):
        k('s_mov_b32 s%d, %d' % (40 + n, 4096 * n))
    ioff = [0, 512, 1536, 2560, 3584]
    k('s_and_b32 s31, s3, 3')
    k('s_mul_i32 s33, s31, %d' % (16 * 9216))
    for i in range(5):
        q0 = 0 if i == 0 else 32 + 64 * (i - 1)
        k('v_add_u32 v%d, %d, v%d' % (vt, q0, vlane) if q0 <= 64 else 'v_add_u32 v%d, 0x%x, v%d' % (vt, q0, vlane))
        k('v_mul_u32_u24 v%d, 0x%x, v%d' % (vD[i], 3641, vt))
        k('v_lshrrev_b32 v%d, 16, v%d' % (vD[i], vD[i]))
        k('v_mul_u32_u24 v%d, 18, v%d' % (vL16, vD[i]))
        k('v_sub_u32 v%d, v%d, v%d' % (vt, vt, vL16))
        k('v_mul_u32_u24 v%d, 0x%x, v%d' % (vD[i], 9216, vD[i]))
        k('v_lshl_add_u32 v%d, v%d, 4, v%d' % (vD[i], vt, vD[i]))
        k('v_add_u32 v%d, s33, v%d' % (vD[i], vD[i]))
        if ioff[i]:
            k('v_subrev_u32 v%d, 0x%x, v%d' % (vD[i], ioff[i], vD[i]))
    k('v_lshlrev_b32 v%d, 4, v%d' % (vL16, vlane))
    lanefn(k, vA[0], vlane, lambda l: ((l >> 4) & 1) * 18560 + (8 * (l >> 5) + ((l >> 2) & 3)) * 288 + (l & 3) * 8, 6, vt)
    k('v_add_u32 v%d, 0x%x, v%d' % (vA[1], 2 * SLOT, vA[0]))
    lanefn(k, vHH, vlane, lambda l: ((l >> 4) & 1) * 147456 + (l >> 5) * 256 + (l & 15) * 16, 6, vt)
    lanefn(k, vc1, vlane, lambda l: (l & 31) * 32, 6, vt)
    k('s_lshr_b32 s32, s3, 2')
    k('s_mul_i32 s34, s32, 18560')
    k('s_mul_i32 s35, s31, 4608')
    k('s_add_u32 s34, s34, s35')
    k('s_mov_b32 s35, 0')
    k('s_lshl_b32 s36, s29, 5')
    k('s_cmp_eq_u32 s32, 0')
    k('s_cselect_b32 s4, s4, s6')
    k('s_cselect_b32 s5, s5, s7')
    k('s_sub_u32 s37, %d, s36' % (576 * 9216))
    srd(k, 8, 4, off_s=36, nrec_s=37)
    k('s_mul_i32 s36, s30, 36864')
    srd(k, 12, 24, off_s=36, off_c=HC_OFF, nrec=36864)
    k('s_lshl_b32 s36, s30, 10')
    srd(k, 16, 24, off_s=36, off_c=SSQ_OFF, nrec=1024)
    k('s_mul_i32 s36, s30, %d' % (2 * 147456))
    k('s_lshl_b32 s37, s29, 9')
    k('s_add_u32 s36, s36, s37')
    srd(k, 20, 24, off_s=36, off_c=HH_OFF, nrec=147456 + 9 * 512)

    dma_last = {}

    def dma(c):
        k('s_add_u32 m0, s34, %d' % ((c % 4) * SLOT))
        k('s_mov_b32 exec_hi, 0')
        k('buffer_load_dwordx4 v%d, s[8:11], s35 offen lds' % vD[0])
        k('s_mov_b32 exec_hi, -1')
        for i in range(1, 5):
            dma_last[c] = k('buffer_load_dwordx4 v%d, s[8:11], s35 offen offset:%d lds' % (vD[i], ioff[i]))
        k('s_add_u32 s35, s35, %d' % (64 * 9216))

    def bload(s):
        so = '0' if s < 4 else 's%d' % (40 + s // 4)
        k('buffer_load_dwordx4 %s, v%d, s[12:15], %s offen offset:%d' % (ar(aB + 4 * (s % NB), 4), vL16, so, (s % 4) * 1024))

    dma(0)
    for s in range(0, 4):
        bload(s)
    dma(1)
    for s in range(4, 8):
        bload(s)
    k('buffer_load_dwordx4 %s, v%d, s[16:19], 0 offen' % (vr(vs, 4), vc1))
    k('buffer_load_dwordx4 %s, v%d, s[16:19], 0 offen offset:16' % (vr(vs + 4, 4), vc1))
    dma(2)
    for s in range(8, 12):
        bload(s)
    dma(3)
    for s in range(12, NB):
        bload(s)

    TAIL = 24
    order = [(s, t) for s in range(TAIL) for t in range(9)] + [(s, t) for t in range(9) for s in range(TAIL, 36)]
    N = len(order)
    D = 6
    sc = Sched(N)
    first = {}
    for n, (s, t) in enumerate(order):
        first.setdefault(s // 4, n)
    bpos = {c: max(0, first[c] - D // 2) for c in range(9)}
    bpos[7] = bpos[6]

    def barrier(c):
        def fn():
            k.wait_lg0()
            k.wait_vm(dma_last[c])
            k('s_barrier')
            if c in (0, 1, 4, 8):
                stamp(k, {0: 1, 1: 2, 4: 3, 8: 4}[c])
        return fn
    for c in range(9):
        if c == 6:
            continue
        sc.at(bpos[c], barrier(c))
    X = os.environ.get('K3X', '')
    for c in range(5):
        if 'L' in X:
            dma_last[c + 4] = dma_last[3]
            continue
        sc.at(bpos[c + 1] + 4, (lambda cc: (lambda: dma(cc)))(c + 4))
    for n, (s, t) in enumerate(order):
        if 'C' in X:
            break
        c = s // 4
        pos = max(n - D, bpos[c])
        off = (c % 2) * SLOT + (16 * (s % 4)) * 288 + 32 * t
        base = vA[(c % 4) // 2]
        r = aA + 4 * (n % RA)
        sc.at(pos, I(k, 'ds_read_b64_tr_b16 %s, v%d offset:%d' % (ar(r, 2), base, off)))
        sc.at(pos, I(k, 'ds_read_b64_tr_b16 %s, v%d offset:%d' % (ar(r + 2, 2), base, off + 4 * 288)))
    for s in range(36 - NB if 'L' not in X else 0):
        sc.at(9 * (s + 1) + 1, (lambda ss: (lambda: bload(ss)))(s + NB))
    st = []
    for i in range(1, 8):
        st.append(I(k, 'v_add_f32 v%d, v%d, v%d' % (vs, vs, vs + i)))
    st.append(I(k, 'v_mov_b32 v%d, %s' % (vc2, f32(1e-5))))
    st.append(I(k, 'v_fmac_f32 v%d, %s, v%d' % (vc2, f32(1.0 / 576), vs)))
    st.append(I(k, 'v_rsq_f32 v%d, v%d' % (vc1, vc2)))
    st.append(I(k, 'v_mul_f32 v%d, %s, v%d' % (vc1, f32(-LOG2E), vc1)))
    sc.spread(100, 120, st)
    for t in range(9):
        g = acc + 16 * t
        u = g + 8
        e = []
        for h in range(2):
            rr = range(4 * h, 4 * h + 4)
            for i in rr:
                e.append(I(k, 'v_mul_f32 v%d, v%d, v%d' % (u + i, g + i, u + i)))
                e.append(I(k, 'v_mul_f32 v%d, v%d, v%d' % (g + i, g + i, vc1)))
            for i in rr:
                e.append(I(k, 'v_exp_f32 v%d, v%d' % (g + i, g + i)))
            for i in rr:
                e.append(I(k, 'v_fma_f32 v%d, v%d, v%d, v%d' % (g + i, g + i, vc2, vc2)))
            for i in rr:
                e.append(I(k, 'v_rcp_f32 v%d, v%d' % (g + i, g + i)))
            for i in rr:
                e.append(I(k, 'v_mul_f32 v%d, v%d, v%d' % (u + i, u + i, g + i)))
        for i in range(4):
            e.append(I(k, 'v_cvt_pk_bf16_f32 v%d, v%d, v%d' % (g + i, u + 2 * i, u + 2 * i + 1)))
        so = '0' if t < 8 else 's41'
        e.append(I(k, 'buffer_store_dwordx4 %s, v%d, s[20:23], %s offen offset:%d%s' % (vr(g, 4), vHH, so, (t % 8) * 512, st_flags)))
        p0 = 9 * TAIL + 12 * (t + 1)
        if t < 8:
            sc.spread(p0 + 2, p0 + 12, e)
        else:
            for fn in e:
                sc.at(N, fn)

    def slot(n):
        s, t = order[n]
        a = vr(acc + 16 * t, 16)
        if 'C' in X:
            if t == 0:
                k('v_accvgpr_read_b32 v%d, a%d' % (vt, aB + 4 * (s % NB)))
            return
        k('v_mfma_f32_32x32x16_bf16 %s, %s, %s, %s' % (a, ar(aA + 4 * (n % RA), 4), ar(aB + 4 * (s % NB), 4), '0' if s == 0 else a))
    sc.run(slot)
    stamp_end(k, 2, 24)
    k.label('k3_end')
    k('s_endpgm')
    return k, '; @launch kernel=k3_kernel grid=(256,1,1) block=(512,1,1) lds=%d' % (4 * SLOT), 168


def k4(st_flags=''):
    k = Kern('k4_kernel')
    V = Alloc(1, 128)
    vt = V(); vlane = V(); vA = [V(), V(), V()]; vD = [V() for _ in range(4)]; vL16 = V(); vB1 = V()
    acc = 16
    RA = 8; aA = 0; NB = 12; aB = 32
    SLOT = 27648
    k('s_cmp_ge_u32 s2, 256')
    k('s_cbranch_scc1 k4_end')
    stamp(k, 0)
    k('s_load_dwordx2 s[4:5], s[0:1], 56')
    k('s_load_dwordx2 s[24:25], s[0:1], 80')
    k('v_lshrrev_b32 v%d, 6, v0' % vt)
    k('v_and_b32 v%d, 63, v0' % vlane)
    k('v_readfirstlane_b32 s3, v%d' % vt)
    k('s_and_b32 s26, s2, 7')
    k('s_lshr_b32 s27, s2, 3')
    k('s_and_b32 s28, s27, 3')
    k('s_lshr_b32 s27, s27, 2')
    k('s_lshl_b32 s30, s27, 3')
    k('s_add_u32 s30, s30, s3')
    for n in range(1, 5):
        k('s_mov_b32 s%d, %d' % (40 + n, 4096 * n))
    ioff = [0, 384, 1408, 2432]
    k('s_mul_i32 s33, s3, %d' % (12 * 1152))
    for i in range(4):
        q0 = 0 if i == 0 else 24 + 64 * (i - 1)
        k('v_add_u32 v%d, %s, v%d' % (vt, lit(q0), vlane))
        k('v_mul_u32_u24 v%d, 0x%x, v%d' % (vD[i], 3641, vt))
        k('v_lshrrev_b32 v%d, 16, v%d' % (vD[i], vD[i]))
        k('v_mul_u32_u24 v%d, 18, v%d' % (vL16, vD[i]))
        k('v_sub_u32 v%d, v%d, v%d' % (vt, vt, vL16))
        k('v_mul_u32_u24 v%d, 0x%x, v%d' % (vD[i], 1152, vD[i]))
        k('v_lshl_add_u32 v%d, v%d, 4, v%d' % (vD[i], vt, vD[i]))
        k('v_add_u32 v%d, s33, v%d' % (vD[i], vD[i]))
        if ioff[i]:
            k('v_subrev_u32 v%d, 0x%x, v%d' % (vD[i], ioff[i], vD[i]))
    k('v_lshlrev_b32 v%d, 4, v%d' % (vL16, vlane))
    k('v_add_u32 v%d, 0x%x, v%d' % (vB1, 147456, vL16))
    lanefn(k, vA[0], vlane, lambda l: (16 * (l >> 5) + 4 * ((l >> 4) & 1) + ((l >> 2) & 3)) * 288 + (l & 3) * 8, 6, vt)
    k('v_add_u32 v%d, 0x%x, v%d' % (vA[1], 2 * SLOT, vA[0]))
    k('v_add_u32 v%d, 0x%x, v%d' % (vA[2], 4 * SLOT, vA[0]))
    k('s_mul_i32 s34, s3, %d' % (12 * 288))
    k('s_mov_b32 s35, 0')
    k('s_mul_i32 s36, s26, %d' % (576 * 1152))
    k('s_mul_i32 s37, s28, 288')
    k('s_add_u32 s36, s36, s37')
    k('s_sub_u32 s37, %d, s36' % (4608 * 1152))
    srd(k, 8, 4, off_s=36, nrec_s=37)
    k('s_mul_i32 s36, s30, %d' % (2 * 147456))
    k('s_mul_i32 s37, s26, %d' % (36 * 512))
    k('s_add_u32 s36, s36, s37')
    srd(k, 12, 24, off_s=36, off_c=HH_OFF, nrec=147456 + 36 * 512)
    k('s_mul_i32 s36, s26, %d' % (64 * 36864))
    k('s_mul_i32 s37, s30, 36864')
    k('s_add_u32 s36, s36, s37')
    k('s_mul_i32 s37, s28, %d' % (9 * 1024))
    k('s_add_u32 s36, s36, s37')
    srd(k, 20, 24, off_s=36, off_c=PART_OFF, nrec=9 * 1024)

    dma_last = {}

    def dma(c):
        k('s_add_u32 m0, s34, %d' % ((c % 5) * SLOT))
        k('s_mov_b64 exec, 0xffffff')
        k('buffer_load_dwordx4 v%d, s[8:11], s35 offen lds' % vD[0])
        k('s_mov_b64 exec, -1')
        for i in range(1, 4):
            dma_last[c] = k('buffer_load_dwordx4 v%d, s[8:11], s35 offen offset:%d lds' % (vD[i], ioff[i]))
        k('s_add_u32 s35, s35, %d' % (96 * 1152))

    def bload(s):
        so = '0' if s < 4 else 's%d' % (40 + s // 4)
        for tau in range(2):
            k('buffer_load_dwordx4 %s, v%d, s[12:15], %s offen offset:%d' % (
                ar(aB + 8 * (s % NB) + 4 * tau, 4), (vL16, vB1)[tau], so, (s % 4) * 1024))

    for c in range(5):
        dma(c)
        for s in range(3 * c, min(3 * c + 3, NB)):
            bload(s)

    TAIL = 15
    order = [(s, t) for s in range(TAIL) for t in range(9)] + [(s, t) for t in range(9) for s in range(TAIL, 18)]
    N = len(order)
    D = 6
    sc = Sched(N)
    first = {}
    for n, (s, t) in enumerate(order):
        first.setdefault(s // 3, n)
    bpos = {c: max(0, first[c] - D // 2) for c in range(6)}

    def barrier(c):
        def fn():
            k.wait_lg0()
            k.wait_vm(dma_last[c])
            k('s_barrier')
            if c in (0, 1, 3, 5):
                stamp(k, {0: 1, 1: 2, 3: 3, 5: 4}[c])
        return fn
    for c in range(6):
        sc.at(bpos[c], barrier(c))
    sc.at(bpos[1] + 4, lambda: dma(5))
    for n, (s, t) in enumerate(order):
        c = s // 3
        sl = c % 5
        pos = max(n - D, bpos[c])
        off = (sl % 2) * SLOT + (32 * (s % 3)) * 288 + 32 * t
        base = vA[sl // 2]
        r = aA + 4 * (n % RA)
        sc.at(pos, I(k, 'ds_read_b64_tr_b16 %s, v%d offset:%d' % (ar(r, 2), base, off)))
        sc.at(pos, I(k, 'ds_read_b64_tr_b16 %s, v%d offset:%d' % (ar(r + 2, 2), base, off + 8 * 288)))
    for s in range(18 - NB):
        sc.at(9 * (s + 1) + 1, (lambda ss: (lambda: bload(ss)))(s + NB))
    for t in range(9):
        a = acc + 8 * t
        e = []
        for i in range(4):
            e.append(I(k, 'v_cvt_pk_bf16_f32 v%d, v%d, v%d' % (a + i, a + 2 * i, a + 2 * i + 1)))
        so = '0' if t < 4 else 's%d' % (40 + t // 4)
        e.append(I(k, 'buffer_store_dwordx4 %s, v%d, s[20:23], %s offen offset:%d%s' % (vr(a, 4), vL16, so, (t % 4) * 1024, st_flags)))
        p0 = 9 * TAIL + 3 * (t + 1)
        for fn in e:
            sc.at(p0 + 2, fn)

    def slot(n):
        s, t = order[n]
        for tau in range(2):
            a = vr(acc + 8 * t + 4 * tau, 4)
            k('v_mfma_f32_16x16x32_bf16 %s, %s, %s, %s' % (a, ar(aA + 4 * (n % RA), 4), ar(aB + 8 * (s % NB) + 4 * tau, 4), '0' if s == 0 else a))
    sc.run(slot)
    stamp_end(k, 3, 24)
    k.label('k4_end')
    k('s_endpgm')
    return k, '; @launch kernel=k4_kernel grid=(256,1,1) block=(512,1,1) lds=%d' % (5 * SLOT), 128


def k5():
    k = Kern('k5_kernel')
    V = Alloc(1, 128)
    vt = V(); vlane = V(); vO = V(); vI = V()
    src = V(36, 4)
    ac = V(8, 4)
    t2 = V(2)
    k('s_cmp_ge_u32 s2, 256')
    k('s_cbranch_scc1 k5_end')
    stamp(k, 0)
    k('s_load_dwordx2 s[4:5], s[0:1], 64')
    k('s_load_dwordx2 s[24:25], s[0:1], 80')
    k('s_lshr_b32 s26, s2, 2')
    k('s_and_b32 s27, s2, 3')
    k('v_lshlrev_b32 v%d, 4, v0' % vI)
    k('s_mul_i32 s36, s26, 36864')
    k('s_mul_i32 s37, s27, 9216')
    k('s_add_u32 s36, s36, s37')
    for x in range(1, 8):
        k('s_mov_b32 s%d, %d' % (40 + x, x * 64 * 36864))
    srd(k, 8, 24, off_s=36, off_c=PART_OFF, nrec=7 * 64 * 36864 + 9216)
    srd(k, 12, 24, off_s=36, off_c=H_OFF, nrec=9216)
    k('buffer_load_dwordx4 %s, v%d, s[12:15], 0 offen' % (vr(src, 4), vI))
    for x in range(8):
        k('buffer_load_dwordx4 %s, v%d, s[8:11], %s offen' % (vr(src + 4 + 4 * x, 4), vI, '0' if x == 0 else 's%d' % (40 + x)))
    k('s_mul_i32 s36, s26, %d' % (32 * 1152))
    k('s_mul_i32 s37, s27, 288')
    k('s_add_u32 s36, s36, s37')
    srd(k, 16, 4, off_s=36, nrec=31 * 1152 + 288)
    lanefn(k, vO, 0, lambda t: (16 * ((t >> 4) & 1) + (t & 15)) * 1152 + (t >> 6) * 32 + ((t >> 5) & 1) * 16, 10, vt)
    stamp(k, 1)
    if PROF:
        k.wait_all()
    stamp(k, 2); stamp(k, 3); stamp(k, 4)
    for j in range(9):
        for i in range(4):
            r = src + 4 * j + i
            if j == 0:
                k('v_lshlrev_b32 v%d, 16, v%d' % (ac + 2 * i, r))
                k('v_and_b32 v%d, 0xffff0000, v%d' % (ac + 2 * i + 1, r))
            else:
                k('v_lshlrev_b32 v%d, 16, v%d' % (t2, r))
                k('v_and_b32 v%d, 0xffff0000, v%d' % (t2 + 1, r))
                k('v_add_f32 v%d, v%d, v%d' % (ac + 2 * i, ac + 2 * i, t2))
                k('v_add_f32 v%d, v%d, v%d' % (ac + 2 * i + 1, ac + 2 * i + 1, t2 + 1))
    for i in range(4):
        k('v_cvt_pk_bf16_f32 v%d, v%d, v%d' % (src + i, ac + 2 * i, ac + 2 * i + 1))
    k('v_permlane16_swap_b32 v%d, v%d' % (src, src + 2))
    k('v_permlane16_swap_b32 v%d, v%d' % (src + 1, src + 3))
    k('buffer_store_dwordx4 %s, v%d, s[16:19], 0 offen' % (vr(src, 4), vO))
    stamp_end(k, 4, 24, None)
    k.label('k5_end')
    k('s_endpgm')
    return k, '; @launch kernel=k5_kernel grid=(256,1,1) block=(576,1,1) lds=0', None
```
